```python
import torch

def _softmax(x, axis=-1):
    return torch.softmax(x, dim=axis)
def _gelu(x):
    return torch.nn.functional.gelu(x, approximate="tanh")
def _silu(x):
    return torch.nn.functional.silu(x)
def _sigmoid(x):
    return torch.sigmoid(x)
def _layernorm(x, axis=-1, eps=1e-5):
    m = x.mean(dim=axis, keepdim=True)
    v = x.var(dim=axis, keepdim=True, unbiased=False)
    return (x - m) / torch.sqrt(v + eps)
def _scatter_add(tgt, idx, src, axis=0):
    return tgt.clone().index_add_(axis, idx, src)
def _segment_sum(src, seg, n):
    out = torch.zeros((n,) + src.shape[1:], dtype=src.dtype)
    return out.index_add_(0, seg, src)
def _pad(x, pw):
    flat = tuple(v for pair in reversed(pw) for v in pair)
    return torch.nn.functional.pad(x, flat)

kernel_name = 'recurrent_scan__sliding_block_cached__glu_gated_glu__decode'

def setup_inputs():

    _w = (lambda a: (lambda t: t.to(torch.bfloat16) if t.is_floating_point() else t)(torch.as_tensor(a)))
    def _A_setup():
        B, Sq, D = 1, 1, 1024
        Hq, Hkv, Sk, Dh = 32, 4, 65536, 128
        assert Hq % Hkv == 0, (Hq, Hkv)
        return {
            "x": _w((lambda *s: torch.randn(*s, dtype=torch.bfloat16) * 0.05)(B, Sq, D)),
            "k_cache": _w((lambda *s: torch.randn(*s, dtype=torch.bfloat16) * 1.6)(B, Hkv, Sk, Dh)),
            "v_cache": _w((lambda *s: torch.randn(*s, dtype=torch.bfloat16) * 0.2)(B, Hkv, Sk, Dh)),
            "wq": _w((lambda *s: torch.randn(*s, dtype=torch.bfloat16) * 1.6)(D, Hq * Dh) * (D ** -0.5)),
            "wo": _w((lambda *s: torch.randn(*s, dtype=torch.bfloat16) * 0.2)(Hq * Dh, D) * ((Hq * Dh) ** -0.5)),
        }
    _A_in = _A_setup()

    def _B_setup():
        B, S, D, F = 1, 1, 1024, 3584
        return {
            "x": _w((lambda *s: torch.randn(*s, dtype=torch.bfloat16) * 0.05)(B, S, D)),
            "w_gate": _w((lambda *s: torch.randn(*s, dtype=torch.bfloat16) * 0.2)(D, F)),
            "w_up": _w((lambda *s: torch.randn(*s, dtype=torch.bfloat16) * 0.1)(D, F)),
            "w_down": _w((lambda *s: torch.randn(*s, dtype=torch.bfloat16) * 0.1)(F, D)),
        }
    _B_in = _B_setup()

    return {
        "A_x": _A_in["x"],
        "A_k_cache": _A_in["k_cache"],
        "A_v_cache": _A_in["v_cache"],
        "A_wq": _A_in["wq"],
        "A_wo": _A_in["wo"],
        "B_x": _B_in["x"],
        "B_w_gate": _B_in["w_gate"],
        "B_w_up": _B_in["w_up"],
        "B_w_down": _B_in["w_down"],
    }

def reference(A_x, A_k_cache, A_v_cache, A_wq, A_wo, B_x, B_w_gate, B_w_up, B_w_down):
    def _A_ref(x, k_cache, v_cache, wq, wo):
        B, Sq, D = x.shape
        Hq, Dh = 32, 128
        Hkv, Sk = k_cache.shape[1], k_cache.shape[2]
        W = min(4096, max(256, Sk // 4))
        rep = Hq // Hkv
        q = (lambda x, *d: x.permute(*d))((x @ wq).reshape(B, Sq, Hq, Dh), 0, 2, 1, 3)
        k = (lambda x, n, axis: torch.repeat_interleave(x, n, dim=axis))(k_cache[:, :, Sk - W:, :], rep, axis=1)
        v = (lambda x, n, axis: torch.repeat_interleave(x, n, dim=axis))(v_cache[:, :, Sk - W:, :], rep, axis=1)
        scores = torch.einsum("bhqd,bhkd->bhqk", q, k) * (Dh ** -0.5)
        p = _softmax(scores, axis=-1)
        o = torch.einsum("bhqk,bhkd->bhqd", p, v)
        return (lambda x, *d: x.permute(*d))(o, 0, 2, 1, 3).reshape(B, Sq, Hq * Dh) @ wo

    def _B_ref(x, w_gate, w_up, w_down):
        g = torch.einsum("bsd,df->bsf", x, w_gate)
        u = torch.einsum("bsd,df->bsf", x, w_up)
        h = _sigmoid(g) * u
        return torch.einsum("bsf,fd->bsd", h, w_down)

    x = A_x
    xn = _layernorm(x, axis=-1)
    s = _A_ref(xn, A_k_cache, A_v_cache, A_wq, A_wo)
    g = _silu(_B_ref(xn, B_w_gate, B_w_up, B_w_down))
    return x + s * g
```

```python
import re
def regs(tok):
    tok = tok.strip()
    tok = tok.lstrip('-')
    m = re.fullmatch(r'abs\((.*)\)', tok)
    if m: tok = m.group(1)
    m = re.fullmatch(r'\|(.*)\|', tok)
    if m: tok = m.group(1)
    m = re.fullmatch(r'([vsa])(\d+)', tok)
    if m: return {(m.group(1), int(m.group(2)))}
    m = re.fullmatch(r'([vsa])\[(\d+):(\d+)\]', tok)
    if m: return {(m.group(1), i) for i in range(int(m.group(2)), int(m.group(3)) + 1)}
    if tok == 'vcc': return {('s', 'vcc')}
    if tok in ('vcc_lo', 'vcc_hi'): return {('s', 'vcc')}
    if tok == 'exec': return {('s', 'exec')}
    if tok == 'm0': return {('s', 'm0')}
    return set()
TRANS = ('v_exp_f32', 'v_log_f32', 'v_rcp_f32', 'v_rsq_f32', 'v_sqrt_f32', 'v_sin_f32', 'v_cos_f32')
class I: pass
def parse(line):
    s = line.split(';')[0].strip()
    if not s or s.endswith(':') or s.startswith('.'): return None
    p = s.split(None, 1)
    op = p[0]; rest = p[1] if len(p) > 1 else ''
    toks = [t.strip() for t in rest.split(',')]
    ops = []
    for t in toks:
        w = t.split()
        if w: ops.append(w[0])
    i = I(); i.op = op; i.text = s
    i.mfma = op.startswith('v_mfma')
    i.valu = op.startswith('v_') and not i.mfma
    i.vmem = op.startswith(('buffer_', 'global_', 'flat_'))
    i.ds = op.startswith('ds_')
    i.dpp = '_dpp' in op or 'row_' in s or 'quad_perm' in s
    i.perml = op.startswith('v_permlane')
    i.trans = op.startswith(TRANS)
    i.rdl = op.startswith(('v_readfirstlane', 'v_readlane'))
    i.sdwa = '_sdwa' in op
    i.w = set(); i.r = set(); i.srcC = set()
    R = [regs(o) for o in ops]
    if i.mfma:
        i.w = R[0]; i.r = R[1] | R[2] | R[3]; i.srcC = R[3]; i.ab = R[1] | R[2]
        i.passes = 8 if '32x32' in op else 4
    elif i.valu:
        if i.perml and 'swap' in op:
            i.w = R[0] | R[1]; i.r = R[0] | R[1]
        else:
            i.w = set(R[0])
            for x in R[1:]: i.r |= x
            if op.startswith(('v_fmac', 'v_dot2c', 'v_writelane')) or i.sdwa or i.dpp: i.r |= R[0]
            if op.startswith(('v_add_co', 'v_sub_co', 'v_addc_co', 'v_div_scale')): i.w |= R[1]
            if op.startswith('v_cmpx'): i.w |= {('s', 'exec')}
    elif i.vmem:
        lds = bool(re.search(r'\blds\b', s)) or 'load_lds' in op
        i.lds = lds
        if 'load' in op and not lds:
            i.w = R[0]
            for x in R[1:]: i.r |= x
        else:
            for x in R: i.r |= x
        i.wide_store = ('store' in op and ('x4' in op or 'x3' in op))
        if i.wide_store:
            i.data = R[0] if op.startswith('buffer') else R[1]
    elif i.ds:
        if op.startswith(('ds_read', 'ds_bpermute', 'ds_permute', 'ds_swizzle')) or '_rtn' in op:
            i.w = R[0]
            for x in R[1:]: i.r |= x
        else:
            for x in R: i.r |= x
    else:
        if op.startswith('s_') and R and not op.startswith(('s_cmp', 's_cbranch', 's_branch', 's_waitcnt', 's_nop', 's_sleep', 's_setprio', 's_barrier', 's_endpgm', 's_bitcmp')):
            i.w = R[0]
            for x in R[1:]: i.r |= x
    i.slots = 1
    if op == 's_nop': i.slots = int(ops[0], 0) + 1
    return i
def need(p, c):
    n = 0
    pv = {x for x in p.w if x[0] in 'va'}; ps = {x for x in p.w if x[0] == 's'}
    if p.valu:
        if c.mfma and (pv & c.r): n = max(n, 2)
        if c.valu and c.dpp and (pv & c.r): n = max(n, 2)
        if c.valu and c.perml and (pv & c.r): n = max(n, 2)
        if c.rdl and (pv & c.r): n = max(n, 1)
        if p.trans and (c.valu or c.ds or c.vmem) and not c.trans and (pv & c.r): n = max(n, 1)
        if p.trans and c.mfma and (pv & c.r): n = max(n, 2)
        if p.sdwa and (c.valu or c.mfma) and (pv & (c.r | c.w)): n = max(n, 1)
        if ps:
            if c.vmem and (ps & c.r): n = max(n, 5)
            if c.valu and (ps & c.r): n = max(n, 4 if c.rdl or c.op.startswith('v_writelane') else 2)
            if c.valu and ('s', 'vcc') in ps and c.op.startswith(('v_cndmask', 'v_addc', 'v_subb', 'v_div_fmas')): n = max(n, 4 if 'fmas' in c.op else 2)
            if ('s', 'exec') in ps:
                if c.valu and c.dpp: n = max(n, 5)
                if c.mfma or c.perml or c.rdl: n = max(n, 4)
    if p.mfma:
        big = {4: 8, 8: 12}[p.passes]
        if c.mfma:
            if pv & c.ab: n = max(n, big)
            if pv & c.srcC:
                if not (c.srcC == p.w and c.passes == p.passes): n = max(n, {4: 6, 8: 10}[p.passes])
            elif pv & c.w: n = max(n, big)
        elif (c.valu or c.vmem or c.ds) and (pv & (c.r | c.w)): n = max(n, big)
        if c.valu and (p.srcC & c.w): n = max(n, {4: 3, 8: 7}[p.passes])
    if p.vmem and getattr(p, 'wide_store', False):
        if (c.valu or c.mfma) and (p.data & c.w): n = max(n, 2)
        elif (p.data & c.w): n = max(n, 1)
    if ('s', 'm0') in p.w and not p.valu:
        if c.vmem and getattr(c, 'lds', False): n = max(n, 1)
    return n
def fix(lines, verbose=False):
    out = []; hist = []
    total = 0
    for line in lines:
        c = parse(line)
        if c is None:
            out.append(line); continue
        req = 0; dist = 0
        for p in reversed(hist):
            n = need(p, c)
            if n > dist: req = max(req, n - dist)
            dist += p.slots
            if dist >= 20: break
        if req > 0:
            total += req
            out.append(f"s_nop {req-1}")
            hist.append(parse(f"s_nop {req-1}"))
        out.append(line); hist.append(c)
        if len(hist) > 40: hist = hist[-40:]
    return out
```

```python
import sys
from hazard import fix
NAME = "recurrent_scan__sliding_block_cached__glu_gated_glu__decode"
HEADER = open("cdna_kernels/" + NAME + ".s.ref").read().split("; Override launch")[0]

L_K = 0; L_V = 16384; L_XN = 32768; L_Q = 34816; QS = 288
L_OW = 37120; OWH = 528; OWW = 8 * OWH
L_ML = L_OW + 4 * OWW
L_PO = L_ML + 256
L_PH = L_PO + 1024
L_FL = L_PH + 1024
F_Q, F_KV, F_C, C_1, C_2, C_O, C_H = [L_FL + 4 * i for i in range(7)]
LDS_SIZE = L_FL + 64
W_E = 0; W_QP = 0x1000; W_GP = W_QP + 0x10000; W_ML = W_GP + 56 * 2048; W_SP = W_ML + 32768
W_DP = W_SP + 64 * 4096; W_OP = W_DP + 64 * 4096; W_END = W_OP + (1 << 20)
STAMP_OFF = 128 << 20

def gen(T=24, TC=6, NT="nt", stamps=False, ctoken=0, prefetch=True):
    L = []
    A = L.append
    NR = T
    labn = [0]
    def lab(p="L"):
        labn[0] += 1
        return f"{p}_{labn[0]}"
    def stamp(i):
        if stamps:
            A(f"s_memrealtime s[{70+2*i}:{71+2*i}]")
    def budget():
        A("s_sub_u32 s43, s43, 1")
        A("s_cbranch_scc1 L_abort")
    def lds_wait(addr, target, sleep=0, vt="v5", va="v7"):
        l = lab("W")
        A(f"{l}:")
        A(f"ds_read_b32 {vt}, {va} offset:{addr}")
        if sleep: A(f"s_sleep {sleep}")
        budget()
        A("s_waitcnt lgkmcnt(0)")
        A(f"v_cmp_le_u32 vcc, {target}, {vt}")
        A(f"s_cbranch_vccz {l}")
    def lds_add(addr, val, vt="v5", va="v7"):
        A(f"v_mov_b32 {vt}, {val}")
        A("s_mov_b64 exec, 1")
        A(f"ds_add_u32 {va}, {vt} offset:{addr}")
        A("s_mov_b64 exec, -1")
    def tagcheck(regsets, acc, first=True):
        for r in regsets:
            for j in range(4):
                if first:
                    A(f"v_xor_b32 {acc}, s{32+j}, v{r+j}"); first = False
                else:
                    A(f"v_bitop3_b32 {acc}, {acc}, v{r+j}, s{32+j} bitop3:0xf6")
    def tagput(r, vm="v6"):
        for j in range(4):
            A(f"v_bfi_b32 v{r+j}, {vm}, s{32+j}, v{r+j}")
    def allreduce(op, v, t):
        for k in (8, 4, 2, 1):
            A(f"{op}_dpp {v}, {v}, {v} row_ror:{k} row_mask:0xf bank_mask:0xf")
        rowreduce(op, v, t)
    def rowreduce(op, v, t):
        A(f"v_mov_b32 {t}, {v}"); A(f"v_permlane16_swap_b32 {v}, {t}"); A(f"{op} {v}, {v}, {t}")
        A(f"v_mov_b32 {t}, {v}"); A(f"v_permlane32_swap_b32 {v}, {t}"); A(f"{op} {v}, {v}, {t}")
    def srd(d, p, size):
        A(f"s_mov_b32 s{d}, s{p}"); A(f"s_mov_b32 s{d+1}, s{p+1}"); A(f"s_mov_b32 s{d+2}, {size}"); A(f"s_mov_b32 s{d+3}, 0x20000")
    def build_sel():
        A("v_and_b32 v5, 1, v0"); A("v_cmp_eq_u32 vcc, 1, v5")
        A("v_mov_b32 v16, 0x0c0c0100"); A("v_mov_b32 v17, 0x01000c0c"); A("v_mov_b32 v18, 0x0c0c0302"); A("v_mov_b32 v19, 0x03020c0c")
        A("v_cndmask_b32 v16, v16, v17, vcc"); A("v_cndmask_b32 v18, v18, v19, vcc")
        A("v_bfe_u32 v5, v0, 1, 2"); A("v_mov_b32 v17, 0x0c0c0c0c")
        for d in range(4):
            A(f"v_cmp_eq_u32 vcc, {d}, v5")
            A(f"v_cndmask_b32 v{8+d}, v17, v16, vcc"); A(f"v_cndmask_b32 v{12+d}, v17, v18, vcc")
    def sel(dst, xreg, half):
        for d in range(4):
            A(f"v_perm_b32 v{dst+d}, v{xreg}, v{xreg}, v{8+4*half+d}")
    def bf16r(v):
        A(f"v_cvt_pk_bf16_f32 {v}, {v}, {v}"); A(f"v_and_b32 {v}, 0xffff0000, {v}")

    A(f"; @launch grid=(256,1,1) block=(576,1,1) lds={LDS_SIZE}")
    A('.amdgcn_target "amdgcn-amd-amdhsa--gfx950"')
    A(".text")
    A(f".globl {NAME}_kernel")
    A(".p2align 8")
    A(f".type {NAME}_kernel,@function")
    A(f"{NAME}_kernel:")
    A("s_cmp_ge_u32 s2, 256")
    A("s_cbranch_scc1 L_end")
    stamp(0)
    A("s_load_dwordx16 s[4:19], s[0:1], 0")
    A("s_load_dwordx8 s[20:27], s[0:1], 64")
    A("v_lshrrev_b32 v1, 6, v0")
    A("v_and_b32 v0, 63, v0")
    A("v_readfirstlane_b32 s3, v1")
    A("s_bfe_u32 s37, s2, 0x20003")
    A("s_and_b32 s42, s2, 7")
    A("s_lshr_b32 s41, s2, 5")
    A("s_lshl_b32 s38, s42, 3"); A("s_or_b32 s38, s38, s41")
    A("s_lshl_b32 s39, s41, 3"); A("s_or_b32 s39, s39, s42")
    A("s_lshr_b32 s40, s38, 4")
    A("s_and_b32 s41, s38, 15"); A("s_lshl_b32 s41, s41, 2"); A("s_or_b32 s41, s41, s37")
    A("s_mov_b32 s43, 400000")
    A("v_lshrrev_b32 v2, 3, v0"); A("v_and_b32 v3, 7, v0"); A("v_lshlrev_b32 v3, 4, v3")
    A("v_lshl_add_u32 v1, v2, 18, v3")
    A("s_lshl_b32 s64, s37, 21"); A("s_lshl_b32 s65, s38, 7"); A("s_add_u32 s64, s64, s65")
    A("s_mov_b32 s46, 8388608"); A("s_mov_b32 s47, 0x20000")
    A("s_mov_b32 s30, %d" % (W_END)); A("s_mov_b32 s31, 0x20000")
    A("v_mov_b32 v7, 0"); A("v_mov_b32 v6, 0xff")
    A("v_lshlrev_b32 v4, 5, v0")
    A("s_cmp_eq_u32 s3, 0")
    A("s_cbranch_scc1 L_S")
    if prefetch:
        A("s_cmp_lg_u32 s3, 5")
        A("s_cbranch_scc1 L_nopf")
        A("s_getpc_b64 s[66:67]")
        A("L_pc:")
        A("s_bfe_u32 s65, s2, 0x40003")
        A("s_cmp_ge_u32 s65, (L_codeend - L_pc) / 1024")
        A("s_cbranch_scc1 L_nopf")
        A("s_lshl_b32 s65, s65, 10")
        A("s_add_u32 s66, s66, s65"); A("s_addc_u32 s67, s67, 0")
        A("v_lshlrev_b32 v20, 4, v0"); A("v_mov_b32 v21, s67")
        A("v_add_co_u32 v20, vcc, s66, v20"); A("v_addc_co_u32 v21, vcc, 0, v21, vcc")
        A("global_load_dwordx4 v[24:27], v[20:21], off")
        A("L_nopf:")
    A("s_waitcnt lgkmcnt(0)")
    A("s_load_dword s36, s[26:27], 0")
    A("s_mov_b32 s28, s26"); A("s_mov_b32 s29, s27")
    A("s_cmp_lg_u32 s3, 1")
    A("s_cbranch_scc1 L_nox")
    A("global_load_dwordx4 v[16:19], v4, s[4:5]")
    A("global_load_dwordx4 v[20:23], v4, s[4:5] offset:16")
    A("L_nox:")
    A("s_cmp_lt_u32 s3, 5")
    A("s_cbranch_scc1 L_A")
    A("s_branch L_C")

    def tags():
        A("s_add_u32 s32, s36, 1"); A("s_add_u32 s33, s36, 38"); A("s_add_u32 s34, s36, 75"); A("s_add_u32 s35, s36, 112")

    A("L_S:")
    A("s_setprio 2")
    A("s_waitcnt lgkmcnt(0)")
    A("s_mov_b32 s44, s10"); A("s_mov_b32 s45, s11")
    RING = 48
    vm = []
    def wait_for(idx):
        k = vm.index(idx)
        A(f"s_waitcnt vmcnt({len(vm)-1-k})")
    def rset(n):
        rho = n if n < 32 else n - 32
        return RING + 4 * (rho % NR)
    setup_done = [False]
    def issue(n):
        if n >= 128: return
        if n < 32:
            r = rset(n)
            A(f"buffer_load_dwordx4 v[{r}:{r+3}], v1, s[44:47], s64 offen {NT}")
            if n < 31: A("s_addk_i32 s64, 0x2000")
        elif n < 64:
            j = (n - 32) & 15; isv = (n - 32) >> 4
            if j & 3 == 0:
                A(f"s_mov_b32 m0, {(L_V if isv else L_K) + (j >> 2) * 4096}")
                A(f"s_add_u32 s64, s65, {(j >> 2) * 4096}")
            sr = 52 if isv else 48
            A(f"buffer_load_dwordx4 v{3 + (j & 1)}, s[{sr}:{sr+3}], s64 offen offset:{(j & 3) * 1024} {NT} lds")
        else:
            m = n - 64; r = rset(n)
            sr = 60 if (m & 1) else 56
            A(f"buffer_load_dwordx4 v[{r}:{r+3}], v2, s[{sr}:{sr+3}], s66 offen {NT}")
            if (m & 1) and m < 63: A("s_addk_i32 s66, 7168")
        vm.append(n)
    for n in range(min(T, 32)): issue(n)
    stamp(1)
    A("s_load_dword s36, s[26:27], 0")
    A("s_mov_b32 s28, s26"); A("s_mov_b32 s29, s27")
    srd(48, 6, 67108864); srd(52, 8, 67108864); srd(56, 16, 7340032); srd(60, 18, 7340032)
    A("s_cmp_lt_u32 s2, 224"); A("s_cselect_b32 s58, s58, 0"); A("s_cselect_b32 s62, s62, 0")
    A("s_lshl_b32 s65, s40, 24"); A("s_lshl_b32 s66, s41, 14"); A("s_add_u32 s65, s65, s66"); A(f"s_add_u32 s65, s65, {61440*256}")
    A(f"s_mul_i32 s66, s37, {256*7168}"); A("s_lshl_b32 s67, s39, 7"); A("s_add_u32 s66, s66, s67")
    A(f"v_mul_u32_u24 v5, {32*7168}, v2"); A("v_lshlrev_b32 v32, 6, v2"); A("v_add_u32 v2, v5, v3")
    A("v_lshrrev_b32 v5, 4, v0"); A("v_and_b32 v3, 15, v0"); A("v_lshlrev_b32 v4, 1, v5"); A("v_xor_b32 v3, v3, v4")
    A("v_lshlrev_b32 v3, 4, v3"); A("v_lshl_add_u32 v3, v5, 8, v3"); A("v_xor_b32 v4, 0x80, v3")
    build_sel()
    A("s_lshl_b32 s67, s37, 9"); A("v_add_u32 v32, s67, v32")
    A("s_waitcnt lgkmcnt(0)")
    tags()
    A("s_barrier")
    for i in range(4): A(f"ds_read_b128 v[{16+4*i}:{19+4*i}], v32 offset:{L_XN + 16*i}")
    A("v_and_b32 v5, 7, v0"); A("v_bfe_u32 v33, v0, 4, 1"); A("v_lshl_add_u32 v5, v33, 3, v5"); A("v_lshlrev_b32 v5, 4, v5")
    A("v_lshrrev_b32 v33, 5, v0"); A("v_lshl_add_u32 v47, v33, 10, v5")
    A("v_mov_b32 v1%d, v47" % 0 if False else "v_mov_b32 v44, v47")
    A(f"s_lshl_b32 s67, s37, 14"); A("s_lshl_b32 s68, s38, 8"); A("s_add_u32 s67, s67, s68"); A(f"s_add_u32 s67, s67, {W_QP}")
    A("s_waitcnt lgkmcnt(0)")
    stamp(2)
    sel(32, 16, 0)
    for n in range(32):
        a = 32 + 4 * (n & 1)
        if n + 1 < 32: sel(32 + 4 * ((n + 1) & 1), 16 + ((n + 1) >> 1), (n + 1) & 1)
        wait_for(n)
        r = rset(n)
        A(f"v_mfma_f32_16x16x32_bf16 v[40:43], v[{a}:{a+3}], v[{r}:{r+3}], {'0' if n == 0 else 'v[40:43]'}")
        issue(n + T)
    stamp(3)
    for j in range(4):
        A(f"v_permlane32_swap_b32 v{40+j}, v{32+j}")
    for j in range(4):
        A(f"v_add_f32_dpp v{40+j}, v{32+j}, v{40+j} row_ror:8 row_mask:0xf bank_mask:0xf")
    tagput(40)
    A("s_mov_b32 exec_lo, 0x00ff00ff"); A("s_mov_b32 exec_hi, 0")
    A("buffer_store_dwordx4 v[40:43], v44, s[28:31], s67 offen sc1"); vm.append("pubq")
    A("s_mov_b64 exec, -1")
    A("v_mov_b32 v1, v44")
    lds_add(F_Q, 1)
    for n in range(32, 64):
        wait_for(n)
        issue(n + T)
        if n + T == 127 - ctoken: lds_add(F_C, 1)
    lds_add(F_KV, 1)
    stamp(4)
    A("s_cmp_lt_u32 s2, 224")
    A("s_cbranch_scc1 L_S2")
    lds_add(F_C, 1)
    A("s_branch L_fin")
    A("L_S2:")
    sel(32, 16, 0)
    for t in range(32):
        a = 32 + 4 * (t & 1)
        if t + 1 < 32: sel(32 + 4 * ((t + 1) & 1), 16 + ((t + 1) >> 1), (t + 1) & 1)
        for m in range(2):
            n = 64 + 2 * t + m
            wait_for(n)
            r = rset(n); acc = 40 + 4 * m
            A(f"v_mfma_f32_16x16x32_bf16 v[{acc}:{acc+3}], v[{a}:{a+3}], v[{r}:{r+3}], {'0' if t == 0 else f'v[{acc}:{acc+3}]'}")
            issue(n + T)
            if n + T == 127 - ctoken: lds_add(F_C, 1)
    stamp(5)
    A("s_lshl_b32 s68, s39, 11"); A(f"s_add_u32 s68, s68, {W_GP}"); A("s_lshl_b32 s67, s37, 8"); A("s_add_u32 s67, s67, s68")
    A("v_lshlrev_b32 v2, 4, v0")
    for j in range(4):
        A(f"v_permlane32_swap_b32 v{40+j}, v{44+j}")
    for j in range(4):
        A(f"v_add_f32_dpp v{40+j}, v{44+j}, v{40+j} row_ror:8 row_mask:0xf bank_mask:0xf")
    tagput(40)
    A("s_mov_b32 exec_lo, 0x00ff00ff"); A("s_mov_b32 exec_hi, 0x00ff00ff")
    A("buffer_store_dwordx4 v[40:43], v1, s[28:31], s67 offen sc1")
    A("s_mov_b64 exec, -1")
    A("s_setprio 3")
    A("v_and_b32 v3, 7, v0"); A("v_lshlrev_b32 v3, 3, v3"); A("v_bfe_u32 v4, v0, 3, 1"); A("v_lshl_add_u32 v3, v4, 2, v3")
    A("v_lshrrev_b32 v4, 4, v0"); A("v_add_lshl_u32 v3, v3, v4, 2")
    l = lab("G")
    A(f"{l}:")
    A("buffer_load_dwordx4 v[48:51], v2, s[28:31], s68 offen sc1")
    A("buffer_load_dwordx4 v[52:55], v2, s[28:31], s68 offen offset:1024 sc1")
    budget()
    A("s_waitcnt vmcnt(0)")
    tagcheck([48, 52], "v5")
    A("v_and_b32 v5, 0xff, v5"); A("v_cmp_ne_u32 vcc, 0, v5")
    A(f"s_cbranch_vccnz {l}")
    stamp(6)
    def red4rows(r):
        A(f"v_permlane32_swap_b32 v{r}, v{r+2}"); A(f"v_permlane32_swap_b32 v{r+1}, v{r+3}")
        A(f"v_add_f32 v{r}, v{r}, v{r+2}"); A(f"v_add_f32 v{r+1}, v{r+1}, v{r+3}")
        A(f"v_permlane16_swap_b32 v{r}, v{r+1}")
        A(f"v_add_f32 v{r}, v{r}, v{r+1}")
    red4rows(48); red4rows(52)
    bf16r("v48"); bf16r("v52")
    A("v_mul_f32 v48, 0xbfb8aa3b, v48"); A("v_exp_f32 v48, v48"); A("v_add_f32 v48, 1.0, v48"); A("v_rcp_f32 v48, v48")
    bf16r("v48")
    A("v_mul_f32 v48, v48, v52")
    bf16r("v48")
    A(f"ds_write_b32 v3, v48 offset:{L_PH}")
    lds_add(C_H, 4)
    stamp(7)
    A("s_branch L_fin")

    A("L_A:")
    A("s_setprio 3")
    A("s_sub_u32 s3, s3, 1")
    A("s_cmp_lg_u32 s3, 0")
    A("s_cbranch_scc1 L_A1")
    A("s_waitcnt vmcnt(0)")
    stamp(1)
    for i in range(8):
        A(f"v_lshlrev_b32 v{24+2*i}, 16, v{16+i}"); A(f"v_and_b32 v{25+2*i}, 0xffff0000, v{16+i}")
    A("v_pk_add_f32 v[40:41], v[24:25], v[26:27]"); A("v_pk_add_f32 v[42:43], v[28:29], v[30:31]")
    A("v_pk_add_f32 v[44:45], v[32:33], v[34:35]"); A("v_pk_add_f32 v[46:47], v[36:37], v[38:39]")
    A("v_pk_add_f32 v[40:41], v[40:41], v[42:43]"); A("v_pk_add_f32 v[44:45], v[44:45], v[46:47]")
    A("v_pk_add_f32 v[40:41], v[40:41], v[44:45]"); A("v_add_f32 v40, v40, v41")
    allreduce("v_add_f32", "v40", "v41")
    A("v_mul_f32 v40, 0x3a800000, v40")
    A("v_mov_b32 v42, 0"); A("v_mov_b32 v43, 0")
    for i in range(8):
        A(f"v_sub_f32 v44, v{24+2*i}, v40"); A(f"v_sub_f32 v45, v{25+2*i}, v40")
        A("v_fmac_f32 v42, v44, v44"); A("v_fmac_f32 v43, v45, v45")
    A("v_add_f32 v42, v42, v43")
    allreduce("v_add_f32", "v42", "v41")
    A("v_mul_f32 v42, 0x3a800000, v42")
    bf16r("v40"); bf16r("v42")
    A("v_add_f32 v42, 0x3727c5ac, v42"); bf16r("v42")
    A("v_sqrt_f32 v42, v42"); bf16r("v42")
    A("v_rcp_f32 v42, v42")
    for i in range(8):
        A(f"v_sub_f32 v44, v{24+2*i}, v40"); A(f"v_sub_f32 v45, v{25+2*i}, v40")
        A("v_cvt_pk_bf16_f32 v44, v44, v45")
        A("v_and_b32 v45, 0xffff0000, v44"); A("v_lshlrev_b32 v44, 16, v44")
        A("v_mul_f32 v44, v44, v42"); A("v_mul_f32 v45, v45, v42")
        A(f"v_cvt_pk_bf16_f32 v{16+i}, v44, v45")
    A(f"ds_write_b128 v4, v[16:19] offset:{L_XN}"); A(f"ds_write_b128 v4, v[20:23] offset:{L_XN+16}")
    A("s_branch L_A2")
    A("L_A1:")
    A("s_cmp_lg_u32 s3, 1")
    A("s_cbranch_scc1 L_A2")
    A("v_mov_b32 v16, 0"); A("v_mov_b32 v17, 0"); A("v_mov_b32 v18, 0"); A("v_mov_b32 v19, 0")
    A("v_lshlrev_b32 v5, 4, v0")
    A(f"ds_write_b128 v5, v[16:19] offset:{L_PH}")
    A(f"ds_write_b128 v5, v[16:19] offset:{L_PH+64}")
    A("L_A2:")
    A("s_waitcnt lgkmcnt(0)")
    tags()
    A("s_barrier")
    stamp(2)
    A("v_lshlrev_b32 v1, 4, v0")
    A("v_and_b32 v8, 15, v0"); A("v_lshrrev_b32 v9, 4, v0")
    A("v_and_b32 v5, 7, v8"); A("v_lshlrev_b32 v5, 1, v5"); A("v_xor_b32 v5, v5, v9"); A("v_lshlrev_b32 v5, 4, v5")
    A("v_lshl_add_u32 v2, v8, 8, v5"); A("s_lshl_b32 s64, s3, 12"); A("v_add_u32 v2, s64, v2")
    A("v_lshrrev_b32 v5, 2, v8"); A("v_lshl_add_u32 v5, v9, 2, v5")
    A("v_and_b32 v10, 7, v5"); A("v_lshlrev_b32 v10, 5, v10")
    A("v_and_b32 v11, 3, v8"); A("v_lshlrev_b32 v11, 3, v11")
    A("v_or_b32 v10, v10, v11"); A("v_lshl_add_u32 v3, v5, 8, v10"); A("v_add_u32 v3, s64, v3")
    A("v_lshrrev_b32 v5, 5, v0"); A("s_lshl_b32 s64, s3, 1"); A("v_add_u32 v5, s64, v5"); A(f"v_mul_u32_u24 v4, {QS}, v5")
    A("v_and_b32 v10, 1, v9"); A("v_lshl_add_u32 v4, v10, 7, v4")
    A("v_and_b32 v10, 7, v8"); A("v_lshl_add_u32 v4, v10, 4, v4")
    A("v_lshrrev_b32 v11, 3, v8"); A("v_lshl_add_u32 v4, v11, 3, v4")
    A(f"v_mul_u32_u24 v12, {OWH}, v5"); A("v_and_b32 v11, 31, v0"); A("v_lshl_add_u32 v12, v11, 4, v12")
    A("v_lshlrev_b32 v13, 5, v5")
    A(f"v_mul_u32_u24 v11, {OWH}, v10"); A("v_lshlrev_b32 v14, 5, v10")
    A(f"v_mul_u32_u24 v10, {QS}, v10"); A("v_lshl_add_u32 v10, v9, 4, v10")
    A("v_lshl_add_u32 v11, v9, 4, v11"); A(f"s_mul_i32 s64, s3, {OWW}"); A("v_add_u32 v11, s64, v11")
    A("s_lshl_b32 s64, s3, 3"); A("v_add_u32 v14, s64, v14")
    A("v_lshlrev_b32 v15, 4, v8"); A("v_lshl_add_u32 v15, v9, 14, v15")
    A("s_lshl_b32 s64, s40, 2"); A("s_add_u32 s64, s64, s3")
    A("s_lshl_b32 s65, s64, 16"); A("s_lshl_b32 s66, s41, 8"); A("s_add_u32 s65, s65, s66"); A(f"s_add_u32 s65, s65, {W_OP}")
    A("s_lshl_b32 s66, s64, 11"); A("s_lshl_b32 s67, s41, 4"); A("s_add_u32 s66, s66, s67"); A(f"s_add_u32 s66, s66, {W_ML}")
    A("v_lshrrev_b32 v90, 5, v0"); A("v_lshlrev_b32 v90, 10, v90")
    A("s_lshl_b32 s44, s64, 10"); A(f"s_add_u32 s44, s44, {W_QP}")
    A("s_add_u32 s45, s44, 0x4000"); A("s_add_u32 s46, s44, 0x8000"); A("s_add_u32 s47, s44, 0xc000")
    A("s_lshl_b32 s48, s38, 14"); A("s_lshl_b32 s49, s3, 12"); A("s_add_u32 s48, s48, s49"); A(f"s_add_u32 s48, s48, {W_OP}")
    A("s_lshr_b32 s49, s38, 1"); A("s_lshl_b32 s49, s49, 10"); A(f"s_add_u32 s49, s49, {W_ML}")
    A("s_lshl_b32 s50, s3, 6"); A("v_lshl_add_u32 v91, v9, 2, s50")
    lds_wait(F_Q, 1, sleep=1)
    stamp(3)
    def qloads():
        for k in range(4):
            A(f"buffer_load_dwordx4 v[{48+4*k}:{51+4*k}], v1, s[28:31], s{44+k} offen sc1")
    qloads()
    lds_wait(F_KV, 1, sleep=1)
    for t in range(4):
        if t: A(f"v_xor_b32 v5, {t*64}, v2")
        A(f"ds_read_b128 v[{16+4*t}:{19+4*t}], {'v5' if t else 'v2'} offset:{L_K}")
    for u in range(8):
        if u: A(f"v_xor_b32 v5, {u*32}, v3")
        A(f"ds_read_b64_tr_b16 v[{32+2*u}:{33+2*u}], {'v5' if u else 'v3'} offset:{L_V}")
    stamp(4)
    l = lab("G"); l2 = lab("G")
    A(f"s_branch {l2}")
    A(f"{l}:")
    qloads()
    budget()
    A(f"{l2}:")
    A("s_waitcnt vmcnt(0)")
    tagcheck([48, 52, 56, 60], "v5")
    A("v_and_b32 v5, 0xff, v5"); A("v_cmp_ne_u32 vcc, 0, v5")
    A(f"s_cbranch_vccnz {l}")
    stamp(5)
    A("v_pk_add_f32 v[48:49], v[48:49], v[52:53]"); A("v_pk_add_f32 v[50:51], v[50:51], v[54:55]")
    A("v_pk_add_f32 v[56:57], v[56:57], v[60:61]"); A("v_pk_add_f32 v[58:59], v[58:59], v[62:63]")
    A("v_pk_add_f32 v[48:49], v[48:49], v[56:57]"); A("v_pk_add_f32 v[50:51], v[50:51], v[58:59]")
    A("v_cvt_pk_bf16_f32 v48, v48, v49"); A("v_cvt_pk_bf16_f32 v49, v50, v51")
    A(f"ds_write_b64 v4, v[48:49] offset:{L_Q}")
    lds_add(C_1, 1)
    lds_wait(C_1, 4)
    for t in range(4): A(f"ds_read_b128 v[{68+4*t}:{71+4*t}], v10 offset:{L_Q + 64*t}")
    A("s_waitcnt lgkmcnt(0)")
    for t in range(4):
        A(f"v_mfma_f32_16x16x32_bf16 v[84:87], v[{16+4*t}:{19+4*t}], v[{68+4*t}:{71+4*t}], {'0' if t == 0 else 'v[84:87]'}")
    A("v_cvt_pk_bf16_f32 v88, v84, v85"); A("v_cvt_pk_bf16_f32 v89, v86, v87")
    A("v_lshlrev_b32 v84, 16, v88"); A("v_and_b32 v85, 0xffff0000, v88"); A("v_lshlrev_b32 v86, 16, v89"); A("v_and_b32 v87, 0xffff0000, v89")
    for j in range(4): A(f"v_mul_f32 v{84+j}, 0x3db504f3, v{84+j}")
    A("v_cvt_pk_bf16_f32 v88, v84, v85"); A("v_cvt_pk_bf16_f32 v89, v86, v87")
    A("v_lshlrev_b32 v84, 16, v88"); A("v_and_b32 v85, 0xffff0000, v88"); A("v_lshlrev_b32 v86, 16, v89"); A("v_and_b32 v87, 0xffff0000, v89")
    A("v_max_f32 v64, v84, v85"); A("v_max3_f32 v64, v64, v86, v87")
    rowreduce("v_max_f32", "v64", "v5")
    for j in range(4): A(f"v_sub_f32 v{84+j}, v{84+j}, v64")
    for j in range(4): A(f"v_mul_f32 v{84+j}, 0x3fb8aa3b, v{84+j}")
    for j in range(4): A(f"v_exp_f32 v{84+j}, v{84+j}")
    A("v_cvt_pk_bf16_f32 v88, v84, v85"); A("v_cvt_pk_bf16_f32 v89, v86, v87")
    A("v_add_f32 v65, v84, v85"); A("v_add_f32 v66, v86, v87")
    for u in range(8):
        A(f"v_mfma_f32_16x16x16_bf16 v[{92+4*u}:{95+4*u}], v[{32+2*u}:{33+2*u}], v[88:89], 0")
        if u == 0: A("v_add_f32 v65, v65, v66")
        if u == 1: A("v_mov_b32 v5, v65")
        if u == 2: A("v_permlane16_swap_b32 v65, v5")
        if u == 3: A("v_add_f32 v65, v65, v5")
        if u == 4: A("v_mov_b32 v5, v65")
        if u == 5: A("v_permlane32_swap_b32 v65, v5")
        if u == 6: A("v_add_f32 v65, v65, v5")
    A("s_mov_b32 exec_lo, 0x00ff00ff"); A("s_mov_b32 exec_hi, 0x00ff00ff")
    A(f"ds_write_b64 v14, v[64:65] offset:{L_ML}")
    for u in range(8):
        A(f"ds_write_b128 v11, v[{92+4*u}:{95+4*u}] offset:{L_OW + 64*u}")
    lds_add(C_2, 1)
    lds_wait(C_2, 4)
    A(f"ds_read_b128 v[64:67], v13 offset:{L_ML}"); A(f"ds_read_b128 v[68:71], v13 offset:{L_ML+16}")
    for k in range(4): A(f"ds_read_b128 v[{48+4*k}:{51+4*k}], v12 offset:{L_OW + OWW*k}")
    A("s_waitcnt lgkmcnt(0)")
    A("v_max_f32 v72, v64, v66"); A("v_max3_f32 v72, v72, v68, v70")
    for k in range(4): A(f"v_sub_f32 v{64+2*k}, v{64+2*k}, v72")
    for k in range(4): A(f"v_mul_f32 v{64+2*k}, 0x3fb8aa3b, v{64+2*k}")
    for k in range(4): A(f"v_exp_f32 v{64+2*k}, v{64+2*k}")
    for j in range(4): A(f"v_mul_f32 v{48+j}, v{48+j}, v64")
    A("v_mul_f32 v73, v65, v64")
    for k in range(1, 4):
        for j in range(4): A(f"v_fmac_f32 v{48+j}, v{48+4*k+j}, v{64+2*k}")
        A(f"v_fmac_f32 v73, v{65+2*k}, v{64+2*k}")
    tagput(48)
    A("buffer_store_dwordx4 v[48:51], v15, s[28:31], s65 offen sc1")
    A("v_mov_b32 v74, 0"); A("v_mov_b32 v75, 0")
    tagput(72)
    A("s_mov_b32 exec_lo, 1"); A("s_mov_b32 exec_hi, 1")
    A("buffer_store_dwordx4 v[72:75], v90, s[28:31], s66 offen sc1")
    A("s_mov_b64 exec, -1")
    stamp(6)
    A("v_lshl_add_u32 v2, v8, 2, v9"); A("v_lshlrev_b32 v2, 2, v2"); A("s_lshl_b32 s50, s3, 8"); A("v_add_u32 v2, s50, v2")
    l = lab("G")
    A(f"{l}:")
    A("buffer_load_dwordx4 v[64:67], v1, s[28:31], s49 offen sc1")
    for k in range(4):
        A(f"buffer_load_dwordx4 v[{16+4*k}:{19+4*k}], v1, s[28:31], s48 offen offset:{1024*k} sc1")
    budget()
    A("s_waitcnt vmcnt(0)")
    tagcheck([64, 16, 20, 24, 28], "v5")
    A("v_and_b32 v5, 0xff, v5"); A("v_cmp_ne_u32 vcc, 0, v5")
    A(f"s_cbranch_vccnz {l}")
    stamp(7)
    A("v_and_b32 v64, 0xffffff00, v64")
    A("v_mov_b32 v66, v64")
    allreduce("v_max_f32", "v66", "v5")
    A("v_sub_f32 v64, v64, v66"); A("v_mul_f32 v64, 0x3fb8aa3b, v64"); A("v_exp_f32 v64, v64")
    for k in range(4): A(f"ds_bpermute_b32 v{68+k}, v91, v64 offset:{16*k}")
    A("v_mul_f32 v65, v65, v64")
    allreduce("v_add_f32", "v65", "v5")
    A("v_rcp_f32 v65, v65")
    A("s_waitcnt lgkmcnt(0)")
    for j in range(4): A(f"v_mul_f32 v{16+j}, v{16+j}, v68")
    for k in range(1, 4):
        for j in range(4): A(f"v_fmac_f32 v{16+j}, v{16+4*k+j}, v{68+k}")
    red4rows(16)
    A("v_mul_f32 v16, v16, v65")
    A(f"ds_write_b32 v2, v16 offset:{L_PO}")
    lds_add(C_O, 1)
    stamp(8)
    A("s_cmp_lt_u32 s2, 224")
    A("s_cbranch_scc1 L_fin")
    A("s_sub_u32 s50, s2, 224")
    A("s_lshr_b32 s51, s50, 1"); A("s_lshl_b32 s51, s51, 6"); A("s_lshl_b32 s52, s3, 4"); A("s_add_u32 s51, s51, s52")
    A("s_and_b32 s52, s50, 1"); A("s_lshl_b32 s52, s52, 2"); A("s_add_u32 s51, s51, s52")
    A("v_and_b32 v5, 1, v0"); A("v_lshl_add_u32 v3, v5, 3, v9"); A("v_add_lshl_u32 v3, v3, s51, 1")
    A("global_load_ushort v40, v3, s[4:5]")
    srd(52, 22, 2048)
    A("v_lshrrev_b32 v4, 1, v0"); A("v_lshlrev_b32 v4, 12, v4"); A("v_lshl_add_u32 v4, v5, 4, v4")
    A("s_lshl_b32 s44, s50, 7"); A("s_lshl_b32 s45, s3, 5"); A("s_add_u32 s44, s44, s45"); A(f"s_add_u32 s44, s44, {W_SP}")
    A(f"s_add_u32 s45, s44, {32*4096}"); A(f"s_add_u32 s46, s44, {W_DP - W_SP}"); A(f"s_add_u32 s47, s46, {32*4096}")
    for j in range(4): A(f"v_and_b32 v{28+j}, s{32+j}, v6")
    l = lab("G")
    A(f"{l}:")
    for k in range(3):
        A(f"buffer_load_dwordx4 v[{16+4*k}:{19+4*k}], v4, s[28:31], s{44+k} offen sc1")
    A("s_mov_b32 exec_hi, 0xffff")
    A("buffer_load_dwordx4 v[28:31], v4, s[28:31], s47 offen sc1")
    A("s_mov_b32 exec_hi, -1")
    budget()
    A("s_waitcnt vmcnt(0)")
    tagcheck([16, 20, 24, 28], "v5")
    A("v_and_b32 v5, 0xff, v5"); A("v_cmp_ne_u32 vcc, 0, v5")
    A(f"s_cbranch_vccnz {l}")
    stamp(9)
    A("v_pk_add_f32 v[16:17], v[16:17], v[20:21]"); A("v_pk_add_f32 v[18:19], v[18:19], v[22:23]")
    A("v_pk_add_f32 v[24:25], v[24:25], v[28:29]"); A("v_pk_add_f32 v[26:27], v[26:27], v[30:31]")
    for j in range(4): A(f"v_permlane32_swap_b32 v{16+j}, v{24+j}")
    for j in range(4): A(f"v_add_f32 v{16+j}, v{16+j}, v{24+j}")
    A("v_permlane16_swap_b32 v16, v17"); A("v_permlane16_swap_b32 v18, v19")
    A("v_add_f32 v16, v16, v17"); A("v_add_f32 v18, v18, v19")
    for k in (8, 4, 2):
        A(f"v_add_f32_dpp v16, v16, v16 row_ror:{k} row_mask:0xf bank_mask:0xf")
        A(f"v_add_f32_dpp v18, v18, v18 row_ror:{k} row_mask:0xf bank_mask:0xf")
    A("v_permlane32_swap_b32 v16, v18")
    bf16r("v18"); bf16r("v16")
    A("v_mul_f32 v17, 0xbfb8aa3b, v18"); A("v_exp_f32 v17, v17"); A("v_add_f32 v17, 1.0, v17"); A("v_rcp_f32 v17, v17")
    A("v_mul_f32 v17, v17, v18"); bf16r("v17")
    A("v_mul_f32 v16, v16, v17"); bf16r("v16")
    A("v_lshlrev_b32 v40, 16, v40")
    A("v_add_f32 v16, v16, v40")
    A("v_cvt_pk_bf16_f32 v16, v16, v16")
    A("s_mov_b32 exec_lo, 0x00030003"); A("s_mov_b32 exec_hi, 0x00030003")
    A("buffer_store_short v16, v3, s[52:55], 0 offen")
    A("s_mov_b64 exec, -1")
    A("s_cmp_lg_u32 s2, 255"); A("s_cbranch_scc1 L_fin0")
    A("s_cmp_lg_u32 s3, 0"); A("s_cbranch_scc1 L_fin0")
    A("v_mov_b32 v5, s32")
    A("s_mov_b64 exec, 1")
    A("buffer_store_dword v5, v7, s[28:31], 0 offen")
    A("L_fin0:")
    stamp(10)
    A("s_branch L_fin")

    A("L_C:")
    A("s_setprio 1")
    A("s_sub_u32 s3, s3, 5")
    A("s_cmp_lt_u32 s3, 2")
    A("s_cselect_b32 s44, s12, s20"); A("s_cselect_b32 s45, s13, s21"); A("s_cselect_b32 s46, s46, 7340032")
    A("s_cselect_b32 s48, s38, s39")
    A(f"s_cselect_b32 s49, 0, {W_DP - W_SP}")
    A("s_cselect_b32 s50, 0, 1024")
    A("s_cselect_b32 s51, 0, 4")
    A("s_and_b32 s52, s3, 1")
    A("s_lshl_b32 s53, s37, 1"); A("s_add_u32 s52, s52, s53")
    A("s_lshl_b32 s64, s48, 17"); A("s_lshl_b32 s53, s52, 8"); A("s_add_u32 s64, s64, s53")
    A(f"s_add_u32 s49, s49, {W_SP}"); A("s_lshl_b32 s53, s48, 12"); A("s_add_u32 s49, s49, s53"); A("s_lshl_b32 s53, s52, 9"); A("s_add_u32 s49, s49, s53")
    A("v_lshl_add_u32 v1, v2, 14, v3")
    A("v_lshlrev_b32 v2, 5, v2"); A("v_add_u32 v2, s50, v2")
    A("v_mov_b32 v4, s51")
    build_sel()
    A("v_and_b32 v5, 7, v0"); A("v_lshrrev_b32 v3, 4, v0"); A("v_lshl_add_u32 v3, v3, 3, v5"); A("v_lshlrev_b32 v3, 4, v3")
    A("s_waitcnt lgkmcnt(0)")
    tags()
    A("s_barrier")
    A("s_cmp_lt_u32 s2, 224"); A("s_cbranch_scc1 L_C1")
    A("s_cmp_ge_u32 s3, 2"); A("s_cbranch_scc1 L_fin")
    A("L_C1:")
    A("s_waitcnt vmcnt(0)")
    lds_wait(F_C, 1, sleep=2)
    stamp(1)
    for n in range(16):
        if n >= TC: A(f"s_waitcnt vmcnt({TC-1})")
        t = n >> 1
        A(f"buffer_load_dwordx4 v[{64+4*n}:{67+4*n}], v1, s[44:47], s64 offen offset:{(t & 1) * 2048 + (n & 1) * 128} {NT}")
        if n & 3 == 3 and n < 15: A("s_addk_i32 s64, 0x1000")
    stamp(2)
    lds_wait(C_O, 4, va="v4")
    stamp(3)
    for k in range(4):
        A(f"ds_read_b128 v[{24+8*k}:{27+8*k}], v2 offset:{L_PO + 256*k}"); A(f"ds_read_b128 v[{28+8*k}:{31+8*k}], v2 offset:{L_PO + 256*k + 16}")
    A("s_waitcnt lgkmcnt(0)")
    for j in range(4):
        A(f"v_pk_add_f32 v[{24+2*j}:{25+2*j}], v[{24+2*j}:{25+2*j}], v[{32+2*j}:{33+2*j}]")
        A(f"v_pk_add_f32 v[{40+2*j}:{41+2*j}], v[{40+2*j}:{41+2*j}], v[{48+2*j}:{49+2*j}]")
    for j in range(4):
        A(f"v_pk_add_f32 v[{24+2*j}:{25+2*j}], v[{24+2*j}:{25+2*j}], v[{40+2*j}:{41+2*j}]")
    for j in range(4): A(f"v_cvt_pk_bf16_f32 v{16+j}, v{24+2*j}, v{25+2*j}")
    sel(32, 16, 0)
    for t in range(8):
        a = 32 + 4 * (t & 1)
        if t + 1 < 8: sel(32 + 4 * ((t + 1) & 1), 16 + ((t + 1) >> 1), (t + 1) & 1)
        for m in range(2):
            n = 2 * t + m; acc = 40 + 4 * m
            if 15 - n < TC: A(f"s_waitcnt vmcnt({15-n})")
            A(f"v_mfma_f32_16x16x32_bf16 v[{acc}:{acc+3}], v[{a}:{a+3}], v[{64+4*n}:{67+4*n}], {'0' if t == 0 else f'v[{acc}:{acc+3}]'}")
    stamp(4)
    for j in range(4):
        A(f"v_permlane32_swap_b32 v{40+j}, v{44+j}")
    for j in range(4):
        A(f"v_add_f32_dpp v{40+j}, v{44+j}, v{40+j} row_ror:8 row_mask:0xf bank_mask:0xf")
    tagput(40)
    A("s_mov_b32 exec_lo, 0x00ff00ff"); A("s_mov_b32 exec_hi, 0x00ff00ff")
    A("buffer_store_dwordx4 v[40:43], v3, s[28:31], s49 offen sc1")
    stamp(5)
    A("L_abort:")
    A("L_fin:")
    if stamps:
        A("s_waitcnt vmcnt(0)")
        stamp(11)
        A("s_waitcnt lgkmcnt(0)")
        A("s_mov_b64 exec, -1")
        A("s_getreg_b32 s3, hwreg(HW_REG_HW_ID)")
        A("v_readfirstlane_b32 s3, v127" if False else "s_nop 0")
        A("s_mul_i32 s64, s2, 9"); A("s_add_u32 s64, s64, s69"); A("s_lshl_b32 s64, s64, 7")
        A("s_add_u32 s26, s26, s64"); A("s_addc_u32 s27, s27, 0"); A(f"s_add_u32 s26, s26, {STAMP_OFF}"); A("s_addc_u32 s27, s27, 0")
        A("s_mov_b64 exec, 1")
        for i in range(12):
            A(f"v_mov_b32 v2, s{70+2*i}"); A(f"v_mov_b32 v3, s{71+2*i}")
            A(f"global_store_dwordx2 v7, v[2:3], s[26:27] offset:{8*i}")
    A("L_end:")
    A("s_endpgm")
    A(".p2align 6")
    A(".fill 256, 4, 0xbf810000")
    A("L_codeend:")
    nv = max(RING + 4 * NR, 128)
    A('.section .rodata,"a"'); A(".p2align 6"); A(f".amdhsa_kernel {NAME}_kernel")
    A(f"  .amdhsa_next_free_vgpr {nv}"); A("  .amdhsa_next_free_sgpr 96"); A(f"  .amdhsa_accum_offset {(nv+3)//4*4}")
    A("  .amdhsa_group_segment_fixed_size 0"); A("  .amdhsa_kernarg_size 96"); A("  .amdhsa_user_sgpr_count 2")
    A("  .amdhsa_user_sgpr_kernarg_segment_ptr 1"); A("  .amdhsa_system_sgpr_workgroup_id_x 1"); A(".end_amdhsa_kernel")
    if stamps:
        i = L.index("v_readfirstlane_b32 s3, v1")
        ins = ["s_mov_b32 s69, s3"] + [f"s_mov_b64 s[{70+2*k}:{71+2*k}], 0" for k in range(1, 12)]
        L[i+1:i+1] = ins
    return HEADER + "\n".join(fix(L)) + "\n"

if __name__ == "__main__":
    open("k1.s", "w").write(gen())
    open("k1_st.s", "w").write(gen(stamps=True))
```

```python
import sys
from hazard import fix
NAME = "recurrent_scan__sliding_block_cached__glu_gated_glu__decode"
HEADER = open("cdna_kernels/" + NAME + ".s.ref").read().split("; Override launch")[0]

L_K = 0; L_V = 65536; L_Q = 131072; QS = 288; L_ML = L_Q + 8 * QS
OWH = 528
LDS_SIZE = L_ML + 512
L_XT = 0; XTS = 96; F_C = 1024; F_E = 1028; F_V = 1032; L_H = 2048
W_CT = 0x400
W_FQ = 0x4000
W_QP = 0x14000
W_XO = W_QP + 6 * 0x4000
W_GP = W_XO + 128 * 2048
W_FG = W_GP + 64 * 4096
W_LOC = W_FG + 64 * 1024
LS = 0x19000
O_SP = 0
O_OP = 0x10000
O_ML = 0x18000
GOFF = 8 * LS
W_END = W_LOC + 2 * GOFF
STAMP_OFF = 128 << 20
NQ = 43
DOC = """
One persistent launch, one workgroup per CU; b = workgroup id, x = b&7, i = (b>>3)&7, ks = b>>6.
 ks < 3 (192 streaming workgroups)
   wave 0   : layernorm, then streams a 344 x 64 tile of wq and a 344 (or 256) x 128 tile of w_gate or w_up through a register ring; GEMV by MFMA
              (A operand = x placed on a diagonal selector, B operand = the weights as loaded); publishes partial sums.
   waves 1-7: pull V, the code and the hand-off lines towards L2, then take 64-row x 128-column units of wo / w_down (three static, the rest from a counter),
              fetch o (two partial softmax sources, merged here) or gate/up partials (h computed here), GEMV, publish partial rows.
 ks == 3 (64 attention workgroups, 256 keys each)
   K / V -> LDS, q gather, scores rounded to bf16 as the reference does, online softmax with the true max, PV, combine over the
   waves, over the 8 workgroups of the group x, publish (o, max, sum); waves 0-3 then reduce the partial rows and write the output.
Hand-offs: every dword carries a tag byte derived from an epoch word in d_ws (bumped once per launch), so stale or foreign bytes never pass.
Hand-offs inside a group x are first looked for in a copy written with plain stores (fast when the group shares an XCD); a coherent
copy is always written too and is used after a bounded number of misses, so the result does not depend on placement. All spins are bounded.
"""
def gen(T=18, T2=30, T3=16, TC=6, TA=4, NT="nt", stamps=False, prefetch=True, nocomm=False, tokgap=2, csleep=2, g0=0, gstep=2,
        astamp=False, locn=200, qsleep=2, outsc="", probe=None, afirst=False, hstamp=False, latewarm=True, kvi=2,
        fsite=10, xsite=13, sptok=(0, 0), xsleep=1, bal=True, touch=0, atouch=0, ctouch=0, agg=None, vpf=1, vfl='', nox=False, T0=24, ahead=3, spst=10, wsleep=1, nst=3, qrep=4, fwarm=True, win=4, latebar=False, latesetup=True, amove=False, xmode='s', prof=False, noqpub=False, vtlb=0, rk=2, rs=4, ifirst=False, qg=99, kill='', lni=0, w1=False, adelay=4, early=True, usp=120, endbar=True, clean=True, lad=0, mrg=1, f4=True, urot=0, mid=True, na=0, nax=0xff, lst='', nog=False, strip='', gw=True, lwin=3, pre=0, vgate=-1, vfrom=0, wst=False, wfrom=0, pp=0, qpp=0, f2=True, ramp=0, dp2=0, dp1=0, dpw=4, lafter=0, sprio=2, cprio=1, refl=False, c3=True, g4=True, hn=(3,1,2,2,2,0,2,2), qw=False, eoff=0, vearly=1, ksplit=True, al8=0, sord=False, ee=0, ep=0):
    pads = False; tlb = False; fsleep = 0
    L = []
    A = L.append
    T0 = T0 or T
    NR = max(T, T2, T0 + lni) + (2 if ifirst else 0)
    labn = [0]
    VST = 250
    diag = stamps or probe is not None
    def lab(p="L"):
        labn[0] += 1
        return f"{p}_{labn[0]}"
    def stamp(i):
        if probe is not None and probe[2] == i:
            A("s_memrealtime s[0:1]"); A("s_waitcnt lgkmcnt(0)"); A(f"v_mov_b32 v{VST}, s0")
        if stamps:
            A("s_memrealtime s[0:1]"); A("s_waitcnt lgkmcnt(0)"); A(f"v_writelane_b32 v{VST}, s0, {i}")
    def stamp0():
        if probe is not None: A(f"v_mov_b32 v{VST+1}, s98"); A(f"v_mov_b32 v{VST}, s98")
        if stamps: A(f"v_writelane_b32 v{VST}, s98, 0")
    def budget():
        A("s_sub_u32 s100, s100, 1")
        A("s_cbranch_scc1 L_fin")
    def tagcheck(regsets, acc):
        first = True
        for r in regsets:
            for j in range(4):
                if first:
                    A(f"v_xor_b32 {acc}, s{32+j}, v{r+j}"); first = False
                else:
                    A(f"v_bitop3_b32 {acc}, {acc}, v{r+j}, s{32+j} bitop3:0xf6")
        A(f"v_and_b32 {acc}, 0xff, {acc}"); A(f"v_cmp_ne_u32 vcc, 0, {acc}")
    def untag(regsets):
        if clean:
            for r in regsets:
                for j in range(4): A(f"v_xor_b32 v{r+j}, s{32+j}, v{r+j}")
    def tagput(r, vm="v6", rnd=False):
        if rnd and clean:
            for j in range(4): A(f"v_add_u32 v{r+j}, 0x80, v{r+j}")
        for j in range(4):
            A(f"v_bfi_b32 v{r+j}, {vm}, s{32+j}, v{r+j}")
    def tagonly(r):
        for j in range(4): A(f"v_and_b32 v{r+j}, s{32+j}, v6")
    def dpp(op, d, a, b, k, bank=0xf):
        A(f"{op}_dpp {d}, {a}, {b} row_ror:{k} row_mask:0xf bank_mask:{hex(bank)}")
    def xrows(op, v, t):
        A(f"v_mov_b32 {t}, {v}"); A(f"v_permlane16_swap_b32 {v}, {t}"); A(f"{op} {v}, {v}, {t}")
        A(f"v_mov_b32 {t}, {v}"); A(f"v_permlane32_swap_b32 {v}, {t}"); A(f"{op} {v}, {v}, {t}")
    def srd(d, p, size):
        A(f"s_mov_b32 s{d}, s{p}"); A(f"s_mov_b32 s{d+1}, s{p+1}"); A(f"s_mov_b32 s{d+2}, {size}"); A(f"s_mov_b32 s{d+3}, 0x20000")
    def build_sel():
        A("v_and_b32 v5, 1, v0"); A("v_cmp_eq_u32 vcc, 1, v5")
        A("v_mov_b32 v24, 0x0c0c0100"); A("v_mov_b32 v25, 0x01000c0c"); A("v_mov_b32 v26, 0x0c0c0302"); A("v_mov_b32 v27, 0x03020c0c")
        A("v_cndmask_b32 v24, v24, v25, vcc"); A("v_cndmask_b32 v26, v26, v27, vcc")
        A("v_bfe_u32 v5, v0, 1, 2"); A("v_mov_b32 v25, 0x0c0c0c0c")
        for d in range(4):
            A(f"v_cmp_eq_u32 vcc, {d}, v5")
            A(f"v_cndmask_b32 v{8+d}, v25, v24, vcc"); A(f"v_cndmask_b32 v{12+d}, v25, v26, vcc")
    def sel(dst, xreg, half):
        for d in range(4):
            A(f"v_perm_b32 v{dst+d}, v{xreg}, v{xreg}, v{8+4*half+d}")
    def pad(k):
        if pads:
            A(f"s_branch L_padx{k}"); A(f"L_pad{k}:"); A("s_branch L_Cbar"); A(f"L_padx{k}:")
    def flagval():
        A("s_mul_i32 s70, s36, 0x01010101"); A("s_add_u32 s70, s70, 0x3c6ef301"); A("s_mov_b32 s71, s70")
    def bf16r(v):
        A(f"v_cvt_pk_bf16_f32 {v}, {v}, {v}"); A(f"v_and_b32 {v}, 0xffff0000, {v}")
    def red4rows(r):
        A(f"v_permlane32_swap_b32 v{r}, v{r+2}"); A(f"v_permlane32_swap_b32 v{r+1}, v{r+3}")
        A(f"v_add_f32 v{r}, v{r}, v{r+2}"); A(f"v_add_f32 v{r+1}, v{r+1}, v{r+3}")
        A(f"v_permlane16_swap_b32 v{r}, v{r+1}")
        A(f"v_add_f32 v{r}, v{r}, v{r+1}")
    def tags():
        A("s_add_u32 s32, s36, 1"); A("s_add_u32 s33, s36, 38"); A("s_add_u32 s34, s36, 75"); A("s_add_u32 s35, s36, 112")
        for j in range(4): A(f"s_and_b32 s{32+j}, s{32+j}, 0xff")
    def gemv_epilogue(acc, rnd=False):
        for j in range(4): A(f"v_permlane32_swap_b32 v{acc+j}, v{acc+4+j}")
        for j in range(4): dpp("v_add_f32", f"v{acc+j}", f"v{acc+4+j}", f"v{acc+j}", 8)
        tagput(acc, rnd=rnd)
    def gstore():
        A("s_mov_b32 exec_hi, 1")
        if not nog: A("buffer_store_dwordx4 v[48:51], v132, s[28:31], s59 offen sc1")
        A("s_mov_b32 exec_hi, -1")
    def local_poll(loads, regsets, bases):
        l = lab("P"); l2 = lab("P")
        A(f"s_mov_b32 s69, {locn}")
        if hstamp:
            stamp(10); A("s_waitcnt vmcnt(0)"); stamp(12)
        A(f"{l}:")
        for x in loads: A(x)
        budget()
        A("s_sub_u32 s69, s69, 1"); A(f"s_cbranch_scc0 {l2}")
        for b in bases: A(f"s_add_u32 {b}, {b}, {GOFF}")
        A("s_barrier")
        gstore()
        A(f"{l2}:")
        A("s_waitcnt vmcnt(0)")
        tagcheck(regsets, "v5")
        A(f"s_cbranch_vccnz {l}")

    A(f"; @launch grid=(256,1,1) block=(512,1,1) lds={LDS_SIZE}")
    for c in DOC.strip("\n").split("\n"): A("; " + c)
    A('.amdgcn_target "amdgcn-amd-amdhsa--gfx950"')
    A(".text")
    A(f".globl {NAME}_kernel")
    if eoff is not None:
        A("; keep the entry near the start of a 4 KB page: the instruction prefetch does not cross pages")
        A(".p2align 12"); A(f".fill {((eoff - 0x300) % 4096) // 4}, 4, 0xbf810000")
    A(".p2align 8")
    A(f".type {NAME}_kernel,@function")
    A(f"{NAME}_kernel:")
    if diag: A("s_memrealtime s[98:99]")
    if ksplit:
        A("s_load_dwordx16 s[4:19], s[0:1], 0")
        A("s_load_dwordx8 s[20:27], s[0:1], 64")
        A("s_cmpk_ge_u32 s2, 0x100")
        A("s_cbranch_scc1 L_end")
    else:
        A("s_cmp_ge_u32 s2, 256")
        A("s_cbranch_scc1 L_end")
        A("s_load_dwordx16 s[4:19], s[0:1], 0")
        A("s_load_dwordx8 s[20:27], s[0:1], 64")
    A("v_lshrrev_b32 v1, 6, v0")
    A("v_and_b32 v0, 63, v0")
    A("v_readfirstlane_b32 s3, v1")
    if diag: A(f"v_mov_b32 v{VST}, 0"); A(f"v_mov_b32 v{VST+1}, 0"); A(f"v_mov_b32 v{VST+2}, v1")
    if afirst: A("s_add_u32 s2, s2, 192"); A("s_and_b32 s2, s2, 255")
    A("s_lshr_b32 s37, s2, 6")
    A("s_and_b32 s42, s2, 7")
    A("s_bfe_u32 s41, s2, 0x30003")
    A("s_lshl_b32 s38, s42, 3"); A("s_add_u32 s38, s38, s41")
    A("s_sub_u32 s39, s38, s42")
    A("s_mov_b32 s100, 400000"); A(f"s_mul_i32 s101, s42, {LS}"); A(f"s_add_u32 s101, s101, {W_LOC}")
    A("s_mov_b32 s47, 0x20000"); A(f"s_mov_b32 s30, {W_END}"); A("s_mov_b32 s31, 0x20000")
    A("v_lshrrev_b32 v2, 3, v0"); A("v_and_b32 v3, 7, v0"); A("v_lshlrev_b32 v3, 4, v3")
    A("v_mov_b32 v6, 0xff"); A("v_mov_b32 v7, 0")
    A("s_cmp_eq_u32 s37, 3")
    A("s_cbranch_scc1 L_end" if "A" in kill else "s_cbranch_scc1 L_A")
    if "S" in kill: A("s_endpgm")
    A("s_cmp_eq_u32 s3, 0")
    A("s_cbranch_scc1 L_S")
    for k in range(ep):
        A(f"s_cmp_eq_u32 s3, {6 - k}"); A(f"s_cbranch_scc1 L_ep{k}")
    if prefetch:
        A("s_cmp_eq_u32 s3, 7")
        A("s_cbranch_scc0 L_Cbar")
        A("s_getpc_b64 s[66:67]")
        A("L_pc:")
        A("s_lshr_b32 s65, s2, 3")
        A("s_cmp_ge_u32 s65, (L_codeend - L_pc) / 1024")
        A("s_cbranch_scc1 L_Cbar")
        A("s_lshl_b32 s65, s65, 10")
        A("s_add_u32 s66, s66, s65"); A("s_addc_u32 s67, s67, 0")
        A("v_lshlrev_b32 v20, 4, v0"); A("v_mov_b32 v21, s67")
        A("v_add_co_u32 v20, vcc, s66, v20"); A("v_addc_co_u32 v21, vcc, 0, v21, vcc")
        A("global_load_dwordx4 v[64:67], v[20:21], off")
    def vcode():
        if not vpf: return
        A("s_lshl_b32 s64, s37, 3"); A("s_add_u32 s64, s64, s41"); A("s_mul_i32 s64, s64, 7"); A("s_add_u32 s64, s64, s3"); A("s_sub_u32 s64, s64, 1")
        A("s_lshr_b32 s65, s42, 1"); A("s_lshl_b32 s65, s65, 24"); A("s_and_b32 s66, s42, 1"); A("s_lshl_b32 s66, s66, 19"); A("s_add_u32 s65, s65, s66"); A(f"s_add_u32 s65, s65, {61440*256}")
        A("s_mov_b32 s50, 67108864"); A("s_mov_b32 s51, 0x20000"); A("v_lshlrev_b32 v4, 4, v0")
        A("s_waitcnt lgkmcnt(0)")
        A("s_mov_b32 s48, s8"); A("s_mov_b32 s49, s9")
        if vfrom: A(f"s_add_u32 s64, s64, {vfrom}")
        if vgate >= 0:
            A("L_VG:")
            A(f"ds_read_b32 v5, v7 offset:{F_V}"); A("s_sleep 2"); budget(); A("s_waitcnt lgkmcnt(0)")
            A("v_cmp_ne_u32 vcc, 0, v5"); A("s_cbranch_vccz L_VG")
        if vearly == 1: A("s_barrier")
        A("L_V0:")
        A("s_bfe_u32 s66, s64, 0x30003"); A("s_lshr_b32 s67, s64, 6"); A("s_and_b32 s68, s64, 7")
        if kvi == 2: A("s_and_b32 s69, s66, 1"); A("s_lshl_b32 s69, s69, 2"); A("s_xor_b32 s67, s67, s69")
        if kvi == 3:
            A(f"s_mul_i32 s69, s66, {rs}"); A("s_add_u32 s67, s67, s69"); A("s_lshr_b32 s69, s42, 1"); A(f"s_mul_i32 s69, s69, {rk}"); A("s_add_u32 s67, s67, s69"); A("s_and_b32 s67, s67, 7")
        A("s_lshl_b32 s66, s66, 16"); A("s_lshl_b32 s67, s67, 13"); A("s_lshl_b32 s68, s68, 10")
        A("s_add_u32 s66, s66, s67"); A("s_add_u32 s66, s66, s68"); A("s_add_u32 s66, s66, s65")
        A(f"s_waitcnt vmcnt({vpf-1})")
        A(f"buffer_load_dwordx4 v[64:67], v4, s[48:51], s66 offen {vfl}")
        A("s_add_u32 s64, s64, 168"); A("s_cmp_lt_u32 s64, 512"); A("s_cbranch_scc1 L_V0")
    A("L_Cbar:")
    if vearly: vcode()
    else: A("s_barrier")
    A("s_branch L_C")
    if tlb:
        A("L_TLB:")
        A("s_and_b32 s64, s41, 3"); A("s_lshl_b32 s64, s64, 21")
        A("s_lshr_b32 s65, s42, 1"); A("s_lshl_b32 s65, s65, 24"); A("s_add_u32 s65, s65, 0xf00000")
        A("s_waitcnt lgkmcnt(0)")
        A("s_cmp_ge_u32 s41, 4"); A("s_cbranch_scc1 L_TLB2")
        A("s_load_dword s70, s[10:11], s64"); A("s_load_dword s71, s[16:17], s64"); A("s_load_dword s72, s[18:19], s64")
        A("s_endpgm")
        A("L_TLB2:")
        A("s_load_dword s70, s[12:13], s64"); A("s_load_dword s71, s[20:21], s64"); A("s_load_dword s72, s[22:23], 0"); A("s_load_dword s73, s[26:27], 0x800"); A("s_load_dword s74, s[8:9], s65")
        A("s_endpgm")
    a0 = len(L)
    A("L_A:")
    A("s_lshr_b32 s40, s38, 4"); A("s_and_b32 s43, s38, 15")
    A("s_lshl_b32 s64, s40, 24"); A("s_lshl_b32 s65, s43, 16"); A("s_add_u32 s64, s64, s65")
    A("s_lshl_b32 s66, s3, 13")
    if kvi == 3:
        A("s_lshl_b32 s65, s3, 10"); A("s_add_u32 s64, s64, s65"); A(f"s_add_u32 s64, s64, {61440*256}")
        A(f"s_mul_i32 s65, s40, {rk}"); A(f"s_mul_i32 s67, s43, {rs}"); A("s_add_u32 s65, s65, s67"); A("s_lshl_b32 s65, s65, 13")
        for j in range(4):
            A(f"s_and_b32 s67, s65, 0xe000"); A(f"s_add_u32 s{80+2*j}, s64, s67"); A(f"s_xor_b32 s67, s67, 0x8000"); A(f"s_add_u32 s{81+2*j}, s64, s67")
            if j < 3: A("s_addk_i32 s65, 0x2000"); A("s_addk_i32 s64, -1024")
        A("s_mov_b64 s[64:65], s[80:81]")
    elif kvi:
        A("s_lshl_b32 s65, s3, 10"); A("s_add_u32 s64, s64, s65"); A(f"s_add_u32 s64, s64, {61440*256}")
        if kvi == 2: A("s_and_b32 s65, s43, 1"); A("s_lshl_b32 s65, s65, 15"); A("s_add_u32 s64, s64, s65")
        A("s_xor_b32 s65, s64, 0x8000")
        for k in range(1, 4): A(f"s_add_u32 s{80+2*k}, s64, {7168*k}"); A(f"s_add_u32 s{81+2*k}, s65, {7168*k}")
    else:
        A("s_add_u32 s64, s64, s66"); A(f"s_add_u32 s64, s64, {61440*256}"); A("s_add_u32 s65, s64, 4096")
    A("v_lshrrev_b32 v9, 4, v0"); A("v_and_b32 v8, 15, v0"); A("v_lshlrev_b32 v4, 1, v9"); A("v_xor_b32 v3, v8, v4")
    A("v_lshlrev_b32 v3, 4, v3"); A("v_lshl_add_u32 v3, v9, 8, v3"); A("v_xor_b32 v4, 0x80, v3")
    A("s_mov_b32 s46, 67108864"); A("s_mov_b32 s50, 67108864"); A("s_mov_b32 s51, 0x20000")
    A("s_mov_b32 m0, s66")
    A("s_waitcnt lgkmcnt(0)")
    A("s_mov_b32 s44, s6"); A("s_mov_b32 s45, s7"); A("s_mov_b32 s48, s8"); A("s_mov_b32 s49, s9")
    def aload(n):
        isv = n >> 3; j = n & 7
        if n and j & 3 == 0: A(f"s_add_u32 m0, s66, {isv * L_V + (j >> 2) * 4096}")
        if n >= TA: A(f"s_waitcnt vmcnt({TA-1})")
        sr = 48 if isv else 44
        so = 64 + (j >> 2) if (j & 3 == 0 or not kvi) else 80 + 2 * (j & 3) + (j >> 2)
        A(f"buffer_load_dwordx4 v{3 + (j & 1)}, s[{sr}:{sr+3}], s{so} offen offset:{(j & 3) * 1024} {NT} lds")
    for n in range(TA + adelay): aload(n)
    Afirst = []
    if amove: Afirst = L[a0:]; del L[a0:]
    else: A("s_branch L_A2")

    A("L_S:")
    A(f"s_setprio {sprio}")
    A("v_lshl_add_u32 v1, v2, 13, v3")
    A(f"s_mul_i32 s64, s37, {344*8192}"); A("s_lshl_b32 s65, s38, 7"); A("s_add_u32 s64, s64, s65")
    if qw: A("s_and_b32 s43, s41, 1"); A(f"s_mul_i32 s65, s43, {176*8192 - 128}"); A("s_add_u32 s64, s64, s65")
    A("s_mov_b32 s46, 8388608"); A("s_mov_b32 s65, 0x10000")
    A("v_lshlrev_b32 v4, 5, v0"); A("s_mul_i32 s66, s37, 688"); A("v_lshlrev_b32 v59, 4, v0"); A("v_add_u32 v5, s66, v59")
    A("s_mov_b32 s50, 2048"); A("s_mov_b32 s51, 0x20000")
    if prof: A("s_memrealtime s[94:95]")
    A("s_waitcnt lgkmcnt(0)")
    if prof: A("s_memrealtime s[96:97]")
    if ee == 2: A("s_load_dword s36, s[26:27], 0")
    A("s_mov_b32 s48, s4"); A("s_mov_b32 s49, s5")
    A("s_mov_b32 s44, s10"); A("s_mov_b32 s45, s11")
    A("buffer_load_dwordx4 v[16:19], v4, s[48:51], 0 offen")
    A("buffer_load_dwordx4 v[20:23], v4, s[48:51], 0 offen offset:16")
    A("buffer_load_dwordx4 v[48:51], v5, s[48:51], 0 offen")
    RING = 80 if qw else 68; XR = 16; AB = 40; ACC = 48; XQ = 68
    NG = 43
    NQ = 44 if qw else 43
    NL = NQ + 2 * NG
    def xreg(t): return XR + ((t >> 1) if (t < 22 or not qw) else 12 + ((t - 22) >> 1))
    vm = []
    def wait_for(idx):
        k = vm.index(idx)
        A(f"s_waitcnt vmcnt({len(vm)-1-k})")
    def rset(n): return RING + 4 * (n % NR)
    nxt = [0]; lim = [NL]
    def issue():
        n = nxt[0]
        if n >= lim[0]: return
        nxt[0] += 1
        r = rset(n)
        if n < NQ:
            if qw:
                if n == 40: A("v_add_u32 v1, s81, v1")
                A(f"buffer_load_dwordx4 v[{r}:{r+3}], {'v56' if n >= NQ-2 else 'v1'}, s[44:47], s64 offen offset:{128 * (n & 1)} {NT}")
                if n & 1 and n < NQ - 1: A("s_add_u32 s64, s64, s65")
            else:
                A(f"buffer_load_dwordx4 v[{r}:{r+3}], {'v56' if n == NQ-1 else 'v1'}, s[44:47], s64 offen {NT}")
                if n < NQ - 1: A("s_add_u32 s64, s64, s65")
        else:
            m = n - NQ
            sr = 60 if (m & 1 and not gw) else 56
            if g4 and m == 64: A("v_add_u32 v2, s75, v2")
            if lim[0] < NL and m == 36: A("v_add_u32 v2, s76, v2")
            if lim[0] < NL and m == 38: A("v_add_u32 v2, s75, v2")
            A(f"buffer_load_dwordx4 v[{r}:{r+3}], {'v57' if m >= 2*NG-2 else 'v2'}, s[{sr}:{sr+3}], s66 offen offset:{128 * (m & 1) if gw else 0} {NT}")
            if (m & 1) and m < 2 * NG - 1: A("s_add_u32 s66, s66, s67")
        vm.append(n)
    for n in range(T0): issue()
    stamp0()
    stamp(1)
    if prof: A(f"v_writelane_b32 v{VST}, s96, 6"); A(f"v_writelane_b32 v{VST}, s94, 14")
    A(f"ds_write_b32 v7, v7 offset:{F_C}")
    if vgate >= 0: A(f"ds_write_b32 v7, v7 offset:{F_V}")
    if not latebar and not ep: A("s_waitcnt lgkmcnt(0)"); A("s_barrier")
    if ee == 1: A("s_load_dword s36, s[26:27], 0")
    A(f"v_mul_u32_u24 v4, {XTS}, v2")
    build_sel()
    def setup2():
        A("s_mov_b32 s28, s26"); A("s_mov_b32 s29, s27")
        srd(56, 16, 7340032); srd(60, 18, 7340032)
        if gw:
            A("s_cmp_gt_u32 s41, 3"); A("s_cselect_b32 s79, 1, 0"); A("s_sub_u32 s39, s39, s79")
            A("s_mov_b32 s74, s37"); A("s_mov_b32 s77, 0")
            A("s_cmp_eq_u32 s41, 3"); A("s_cbranch_scc0 L_g1")
            A("s_mov_b32 s77, 3")
            if g4:
                if hn is None:
                    A("s_mul_i32 s79, s42, 3"); A("s_add_u32 s79, s79, s37")
                else:
                    assert sum(hn) == 14
                    tab = [[15] * 8 for _ in range(3)]; g = 0
                    for x_ in range(8):
                        for k in range(hn[x_]): tab[(k + x_) % 3][x_] = g; g += 1
                    c = [sum(v << (4 * x_) for x_, v in enumerate(r)) for r in tab]
                    A(f"s_mov_b32 s79, {hex(c[0])}"); A("s_cmp_eq_u32 s37, 1"); A(f"s_cselect_b32 s79, {hex(c[1])}, s79"); A("s_cmp_eq_u32 s37, 2"); A(f"s_cselect_b32 s79, {hex(c[2])}, s79")
                    A("s_lshl_b32 s78, s42, 2"); A("s_lshr_b32 s79, s79, s78"); A("s_and_b32 s79, s79, 15")
                A("s_cmp_lt_u32 s79, 14"); A("s_cbranch_scc0 L_g1")
                A("s_mov_b32 s77, 0"); A("s_mov_b32 s74, 3")
                A("s_and_b32 s39, s79, 14"); A("s_lshl_b32 s39, s39, 2"); A("s_and_b32 s79, s79, 1"); A("s_add_u32 s39, s39, s79"); A("s_add_u32 s39, s39, 2")
            A("L_g1:")
            A("s_and_b32 s78, s39, 1"); A("s_cselect_b32 s56, s18, s16"); A("s_cselect_b32 s57, s19, s17")
            A("s_lshr_b32 s39, s39, 1")
            A("s_cmp_eq_u32 s77, 3"); A("s_cselect_b32 s58, 0, s58")
            A("s_mov_b32 s75, 0"); A("s_mul_i32 s76, s74, 344")
            if g4:
                A("s_lshl_b32 s79, s74, 8"); A("s_and_b32 s67, s39, 3"); A("s_cmp_eq_u32 s67, 1"); A("s_cselect_b32 s75, 0x40000000, 0"); A("s_cselect_b32 s76, s79, s76")
                A("s_lshl_b32 s79, s76, 1"); A("v_lshlrev_b32 v5, 4, v0"); A("v_add_u32 v5, s79, v5")
                A("buffer_load_dwordx4 v[60:63], v5, s[48:51], 0 offen"); vm.append("x2")
            A("s_mul_i32 s66, s76, 7168"); A("s_lshl_b32 s67, s39, 8"); A("s_add_u32 s66, s66, s67"); A(f"s_mov_b32 s67, {8*7168}")
        else:
            A("s_add_u32 s78, s42, 3"); A("s_and_b32 s78, s78, 7"); A("s_cmp_eq_u32 s78, 7"); A("s_cselect_b32 s78, 3, s78")
            A("s_cmp_eq_u32 s41, s78"); A("s_cselect_b32 s79, 3, s41")
            A("s_and_b32 s77, s41, 3"); A("s_cmp_eq_u32 s77, 3"); A("s_cselect_b32 s79, s78, s79")
            A("s_sub_u32 s39, s39, s41"); A("s_add_u32 s39, s39, s79")
            A("s_mul_i32 s76, s37, 344")
            A("s_cmp_eq_u32 s41, 7"); A("s_cselect_b32 s74, 4, 0"); A("s_cselect_b32 s75, 0x40000000, 0"); A("s_cselect_b32 s79, 192, 0")
            A("s_add_u32 s74, s74, s37"); A("s_add_u32 s76, s76, s79")
            A("s_mul_i32 s66, s76, 7168"); A("s_lshl_b32 s67, s39, 7"); A("s_add_u32 s66, s66, s67"); A(f"s_mov_b32 s67, {8*7168}")
        A("v_mul_u32_u24 v5, 7168, v2"); A("v_add_u32 v2, v5, v3")
        A("s_cmp_eq_u32 s37, 2"); A("s_cselect_b32 s68, 0x40000000, 0")
        A("s_and_b32 s76, s68, s75")
        if qw: A("s_lshl_b32 s80, s43, 30"); A("s_and_b32 s81, s80, s68"); A("v_add_u32 v56, s80, v1")
        else: A("v_add_u32 v56, s68, v1")
        if g4: A("s_or_b32 s68, s68, s75")
        A("v_add_u32 v57, s68, v2")
        A("v_bfe_u32 v5, v0, 4, 1"); A("v_lshl_add_u32 v3, v5, 7, v3"); A("v_lshrrev_b32 v5, 5, v0")
        if qw: A("v_lshl_add_u32 v65, v5, 8, v3")
        A(f"v_lshl_add_u32 v3, v5, {12 if gw else 11}, v3")
        if qw:
            A("s_lshl1_add_u32 s82, s37, s43"); A("s_lshl_b32 s68, s82, 14"); A("s_lshr_b32 s69, s38, 1"); A("s_lshl_b32 s69, s69, 9"); A("s_add_u32 s68, s68, s69"); A(f"s_add_u32 s68, s68, {W_QP}")
        else:
            A("s_lshl_b32 s68, s37, 14"); A("s_lshl_b32 s69, s38, 8"); A("s_add_u32 s68, s68, s69"); A(f"s_add_u32 s68, s68, {W_QP}")
        if gw:
            A("s_lshl_b32 s69, s39, 13"); A("s_lshl_b32 s70, s78, 11"); A("s_add_u32 s69, s69, s70"); A("s_lshl_b32 s70, s74, 8"); A("s_add_u32 s69, s69, s70"); A(f"s_add_u32 s69, s69, {W_GP}")
            A("s_lshl_b32 s73, s39, 10"); A("s_lshl_b32 s70, s78, 4"); A("s_add_u32 s73, s73, s70"); A("s_lshl_b32 s70, s74, 2"); A("s_add_u32 s73, s73, s70"); A(f"s_add_u32 s73, s73, {W_FG}")
        else:
            A("s_lshl_b32 s69, s39, 12"); A("s_lshl_b32 s70, s74, 8"); A("s_add_u32 s69, s69, s70"); A(f"s_add_u32 s69, s69, {W_GP}")
            A("s_lshl_b32 s73, s39, 10"); A("s_lshl_b32 s70, s74, 2"); A("s_add_u32 s73, s73, s70"); A(f"s_add_u32 s73, s73, {W_FG}")
        A("v_mov_b32 v58, 1")
        A("s_lshr_b32 s72, s38, 1"); A("s_lshl_b32 s72, s72, 11"); A("s_and_b32 s70, s38, 1"); A("s_mul_i32 s70, s70, 3"); A("s_add_u32 s70, s70, s37")
        A("s_lshl_b32 s70, s70, 2"); A("s_add_u32 s72, s72, s70"); A(f"s_add_u32 s72, s72, {W_FQ}")
    if not latesetup: setup2()
    if ep: A("s_waitcnt lgkmcnt(0)"); A("s_barrier")
    A("s_mov_b32 s71, 0x3f803f80")
    A("v_lshlrev_b32 v59, 1, v0")
    if qw:
        A("v_cmp_le_u32 vcc, 22, v0"); A("s_mul_i32 s66, s43, 48"); A("v_add_u32 v58, s66, v4"); A("v_cndmask_b32 v5, 0, 4, vcc"); A("v_add_u32 v59, v59, v5")
    pad(2)
    A(f"s_waitcnt vmcnt({len(vm)})")
    stamp(5)
    if not latebar: A("L_TS0:")
    ln0 = len(L)
    A("v_dot2_f32_bf16 v64, v16, s71, 0"); A("v_dot2_f32_bf16 v65, v17, s71, 0")
    for i in range(2, 8, 2):
        A(f"v_dot2_f32_bf16 v64, v{16+i}, s71, v64"); A(f"v_dot2_f32_bf16 v65, v{17+i}, s71, v65")
    unp = []
    for i in range(8):
        unp.append(f"v_lshlrev_b32 v{24+2*i}, 16, v{16+i}"); unp.append(f"v_and_b32 v{25+2*i}, 0xffff0000, v{16+i}")
    def U(k):
        for _ in range(k):
            if unp: A(unp.pop(0))
    U(3)
    A("v_add_f32 v64, v64, v65")
    for k in (8, 4, 2, 1):
        U(2); dpp("v_add_f32", "v64", "v64", "v64", k)
    A("v_mov_b32 v65, v64"); U(2); A("v_permlane16_swap_b32 v64, v65"); A("v_add_f32 v64, v64, v65")
    A("v_mov_b32 v65, v64"); U(3); A("v_permlane32_swap_b32 v64, v65"); A("v_add_f32 v64, v64, v65")
    A("v_mul_f32 v64, 0x3a800000, v64")
    for i in range(8):
        A(f"v_pk_add_f32 v[{24+2*i}:{25+2*i}], v[{24+2*i}:{25+2*i}], v[64:65] op_sel_hi:[1,0] neg_lo:[0,1] neg_hi:[0,1]")
    A("v_pk_mul_f32 v[66:67], v[24:25], v[24:25]"); A("v_pk_mul_f32 v[44:45], v[26:27], v[26:27]")
    for i in range(2, 8, 2):
        A(f"v_pk_fma_f32 v[66:67], v[{24+2*i}:{25+2*i}], v[{24+2*i}:{25+2*i}], v[66:67]")
        A(f"v_pk_fma_f32 v[44:45], v[{26+2*i}:{27+2*i}], v[{26+2*i}:{27+2*i}], v[44:45]")
    A("v_pk_add_f32 v[66:67], v[66:67], v[44:45]"); A("v_add_f32 v66, v66, v67")
    def center(src):
        r = []
        for i in range(4):
            r.append(f"v_lshlrev_b32 v{24+2*i}, 16, v{src+i}"); r.append(f"v_and_b32 v{25+2*i}, 0xffff0000, v{src+i}")
        for i in range(4):
            r.append(f"v_pk_add_f32 v[{24+2*i}:{25+2*i}], v[{24+2*i}:{25+2*i}], v[64:65] op_sel_hi:[1,0] neg_lo:[0,1] neg_hi:[0,1]")
        for i in range(4): r.append(f"v_cvt_pk_bf16_f32 v{src+i}, v{24+2*i}, v{25+2*i}")
        for i in range(4):
            r.append(f"v_lshlrev_b32 v{24+2*i}, 16, v{src+i}"); r.append(f"v_and_b32 v{25+2*i}, 0xffff0000, v{src+i}")
        return r
    def scale_store(src, first=False):
        for i in range(4):
            A(f"v_pk_mul_f32 v[{24+2*i}:{25+2*i}], v[{24+2*i}:{25+2*i}], v[66:67] op_sel_hi:[1,0]")
        for i in range(4): A(f"v_cvt_pk_bf16_f32 v{src+i}, v{24+2*i}, v{25+2*i}")
        A(f"s_mov_b32 exec_hi, {'0x3fff' if qw else '0xffff'}")
        for i in range(4):
            A(f"ds_write_b16 v59, v{src+i} offset:{L_XT + XTS*2*i}"); A(f"ds_write_b16_d16_hi v59, v{src+i} offset:{L_XT + XTS*(2*i+1)}")
        A("s_mov_b32 exec_hi, -1")
        if first and qw:
            for i in range(3): A(f"ds_read_b128 v[{XQ+4*i}:{XQ+3+4*i}], v58 offset:{L_XT + 16*i}")
        for i in range(6): A(f"ds_read_b128 v[{XR+4*i}:{XR+3+4*i}], v4 offset:{L_XT + 16*i}")
        A(f"s_waitcnt lgkmcnt({6 if (first and qw and not diag) else 0})")
    pad(3)
    unp += ["v_cvt_pk_bf16_f32 v64, v64, v64", "v_and_b32 v64, 0xffff0000, v64"] + center(48)
    for k in (8, 4, 2, 1):
        U(2); dpp("v_add_f32", "v66", "v66", "v66", k)
    A("v_mov_b32 v67, v66"); U(2); A("v_permlane16_swap_b32 v66, v67"); A("v_add_f32 v66, v66, v67")
    A("v_mov_b32 v67, v66"); U(2); A("v_permlane32_swap_b32 v66, v67"); A("v_add_f32 v66, v66, v67")
    A("v_mul_f32 v66, 0x3a800000, v66")
    bf16r("v66")
    A("v_add_f32 v66, 0x3727c5ac, v66"); bf16r("v66")
    A("v_sqrt_f32 v66, v66"); U(1); bf16r("v66")
    A("v_rcp_f32 v66, v66")
    U(99)
    if lni:
        body = L[ln0:]; del L[ln0:]
        gap = len(body) // lni
        for k, x in enumerate(body):
            A(x)
            if k % gap == gap - 1 and nxt[0] < T0 + lni: issue()
        T0 = nxt[0]
    scale_store(48, True)
    if latebar: A("s_barrier"); A("L_TS0:")
    stamp(2)
    if ee == 0: A("s_load_dword s36, s[26:27], 0")
    def token(k=1):
        if k != 1: A(f"v_mov_b32 v58, {k}")
        A("s_mov_b64 exec, 1"); A(f"ds_add_u32 v7, v58 offset:{F_C}"); A("s_mov_b64 exec, -1")
    XB = XQ if qw else XR
    sel(AB, XB, 0)
    for n in range(NQ):
        t = n >> 1 if qw else n
        a = AB + 4 * (t & 1); acc = ACC + (4 * (n & 1) if qw else 0)
        if (not qw or n & 1 == 0) and t + 1 < (22 if qw else NQ): sel(AB + 4 * ((t + 1) & 1), XB + ((t + 1) >> 1), (t + 1) & 1)
        if n == 10 and latesetup: setup2()
        if ee > 2 and n == ee: A("s_load_dword s36, s[26:27], 0")
        if n == vgate: A(f"ds_write_b32 v7, v6 offset:{F_V}")
        if n == NQ - 4:
            A("s_waitcnt lgkmcnt(0)")
            tags(); flagval()
            A("v_mov_b32 v5, s36"); A(f"ds_write_b32 v7, v5 offset:{F_E}"); A("v_mov_b32 v1, s70"); A("v_lshlrev_b32 v56, 7, v0")
        wait_for(n)
        r = rset(n)
        A(f"v_mfma_f32_16x16x32_bf16 v[{acc}:{acc+3}], v[{a}:{a+3}], v[{r}:{r+3}], {'0' if t == 0 else f'v[{acc}:{acc+3}]'}")
        if n >= T0 - T: issue()
        if n >= qg and nxt[0] - (n + 1) < T2: issue()
        if prof and n in (10, 21, 32): stamp(8 + (10, 21, 32).index(n))
    gemv_epilogue(ACC, True)
    A("s_mov_b32 exec_lo, 0x00ff00ff"); A(f"s_mov_b32 exec_hi, {'0x00ff00ff' if qw else 0}")
    if not noqpub: A(f"buffer_store_dwordx4 v[{ACC}:{ACC+3}], {'v65' if qw else 'v3'}, s[28:31], s68 offen sc1"); vm.append("pubq")
    A(f"s_mov_b64 exec, {(1 << qrep) - 1}")
    if not noqpub: A("buffer_store_dword v1, v56, s[28:31], s72 offen sc1"); vm.append("flagq")
    A("s_mov_b64 exec, -1")
    stamp(3)
    def gphase(steps, W, early, lefts):
        lim[0] = NQ + 2 * steps
        sel(AB, XR, 0)
        grow = W - (nxt[0] - NQ)
        lefts = list(lefts)
        all_lefts = list(lefts)
        if lafter: lefts = lefts[:-lafter]
        for t in range(steps):
            if g4 and t == 32: A("s_cmp_lg_u32 s75, 0"); A("s_cbranch_scc1 L_S3")
            for e in early:
                if e == t: token()
            a = AB + 4 * (t & 1)
            if t + 1 < steps: sel(AB + 4 * ((t + 1) & 1), xreg(t + 1), (t + 1) & 1)
            for m in range(2):
                n = NQ + 2 * t + m
                if not w1: wait_for(n)
                elif m == 0: wait_for(n + 1)
                r = rset(n); acc = ACC + 4 * m
                if ifirst and grow >= 0: issue()
                A(f"v_mfma_f32_16x16x32_bf16 v[{acc}:{acc+3}], v[{a}:{a+3}], v[{r}:{r+3}], {'0' if t == 0 else f'v[{acc}:{acc+3}]'}")
                if grow < 0: grow += 1
                elif not ifirst: issue()
                if t >= g0 and (m == 1 or gstep > 1):
                    for _ in range(max(1, gstep // 2)):
                        if grow > 0: issue(); grow -= 1
                if prof and m == 1 and t in (10, 21, 32): stamp(11 + (10, 21, 32).index(t))
                left = lim[0] - 1 - n
                if g4 and left in [x + 24 for x in all_lefts[:sum(1 for y in all_lefts if y < 22)]]:
                    lb = lab("T"); A("s_cmp_eq_u32 s75, 0"); A(f"s_cbranch_scc1 {lb}"); token(); A(f"{lb}:")
                while lefts and left <= lefts[0]:
                    token(); lefts.pop(0)
    A("s_cmp_eq_u32 s77, 3")
    A("s_cbranch_scc0 L_S2")
    if gw:
        token(ahead + lwin)
        A("s_branch L_fin")
    else:
        A("s_cmp_eq_u32 s75, 0"); A("s_cbranch_scc1 L_S1")
        for i in range(3): A(f"ds_read_b128 v[{XR+4*i}:{XR+3+4*i}], v4 offset:{L_XT + 48 + 16*i}")
        A("s_waitcnt lgkmcnt(0)")
        A("L_S1:")
        save = (list(vm), nxt[0])
        gphase(24, T3, [spst] * ahead + [spst + 4, spst + 6][:win - 2], [8 + tokgap, tokgap])
        A("s_branch L_S3")
        vm[:] = save[0]; nxt[0] = save[1]
    A("L_S2:")
    if g4:
        A("s_cmp_eq_u32 s75, 0"); A("s_cbranch_scc1 L_S2b")
        for x in center(60): A(x)
        scale_store(60)
        A("L_S2b:")
    gphase(NG, T2, [], [8 * k + tokgap for k in range(ahead + win - 1, -1, -1)])
    A("L_S3:")
    A("s_nop 7")
    gemv_epilogue(ACC, True)
    A("s_mov_b32 exec_lo, 0x00ff00ff"); A("s_mov_b32 exec_hi, 0x00ff00ff")
    A(f"buffer_store_dwordx4 v[{ACC}:{ACC+3}], v3, s[28:31], s69 offen sc1")
    A("s_mov_b64 exec, 0xff")
    A("buffer_store_dword v1, v56, s[28:31], s73 offen sc1")
    if lafter: token(lafter)
    stamp(4)
    A("s_branch L_fin")

    A("L_C:")
    if touch:
        A("s_mov_b64 exec, 0")
        for k in range(1, 7): A(f"s_cmp_eq_u32 s3, {k}"); A(f"s_cbranch_scc1 TS_{k-1}")
        A("s_branch TS_6")
        A("L_TSret:")
        A("s_mov_b64 exec, -1")
    A("s_setprio 1")
    if not vearly: vcode()
    build_sel()
    A("v_mov_b32 v130, 1")
    A("s_waitcnt lgkmcnt(0)")
    A("s_lshl_b32 s22, s3, 1"); A("s_sub_u32 s22, s22, 1")
    if pre: A(f"s_cmp_eq_u32 s3, {nst + 1}"); A(f"s_cselect_b32 s19, {pre}, 0"); A("s_sub_u32 s22, s22, s19")
    A("s_lshl_b32 s23, s42, 7"); A("s_lshl_b32 s24, s37, 10"); A("s_add_u32 s24, s24, s23")
    A("s_lshl_b32 s64, s37, 3"); A("s_add_u32 s64, s64, s41"); A("s_mul_i32 s65, s3, 24"); A("s_add_u32 s64, s64, s65"); A("s_sub_u32 s64, s64, 24")
    stamp0()
    A("s_mov_b32 s28, s26"); A("s_mov_b32 s29, s27")
    if vtlb:
        A("s_cmp_eq_u32 s3, 6"); A("s_cbranch_scc0 L_VT")
        A(f"v_lshlrev_b32 v4, {vtlb}, v0"); A("s_lshl_b32 s65, s2, 7"); A("v_add_u32 v4, s65, v4")
        A(f"s_mov_b64 exec, {hex((1 << (7340032 >> vtlb)) - 1)}")
        for p in (16, 18, 12, 20): A(f"global_load_dword v64, v4, s[{p}:{p+1}] nt")
        A("s_mov_b64 exec, -1")
        A("L_VT:")
    if fwarm:
        A("s_cmp_ge_u32 s64, 97"); A("s_cbranch_scc1 L_CW")
        A("s_lshl_b32 s65, s64, 10"); A("s_add_u32 s65, s65, s101"); A("v_lshlrev_b32 v4, 4, v0")
        if wfrom: A(f"s_cmp_lt_u32 s64, {wfrom}"); A("s_cbranch_scc1 L_CW")
        if wst:
            A("v_mov_b64 v[16:17], 0"); A("v_mov_b64 v[18:19], 0"); A("buffer_store_dwordx4 v[16:19], v4, s[28:31], s65 offen")
        else: A("buffer_load_dwordx4 v[64:67], v4, s[28:31], s65 offen")
        A("L_CW:")
    A("s_waitcnt vmcnt(0)")
    def pwait(sleep, lenient=0):
        l = lab("W")
        A(f"{l}:")
        A(f"ds_read_b32 v4, v7 offset:{F_C}" if lenient else f"ds_read_b64 v[4:5], v7 offset:{F_C}")
        if sleep: A(f"s_sleep {sleep}")
        budget()
        A(f"s_waitcnt lgkmcnt({lenient})")
        A("v_cmp_le_u32 vcc, s22, v4")
        A(f"s_cbranch_vccz {l}")
    def padd():
        A("s_mov_b64 exec, 1"); A(f"ds_add_u32 v7, v130 offset:{F_C}"); A("s_mov_b64 exec, -1")
    if ctouch:
        A("s_mov_b64 exec, 0"); A("s_branch TC_0"); A("L_TCret:"); A("s_mov_b64 exec, -1")
    pwait(csleep)
    A("L_TC0:")
    A("v_readfirstlane_b32 s36, v5"); tags(); flagval()
    A(f"s_cmp_le_u32 s3, {nst}"); A("s_cbranch_scc1 L_C0")
    A("v_cmp_le_u32 vcc, 64, v4"); A("s_cbranch_vccnz L_fin")
    if nst >= 5: A("s_branch L_fin")
    A("L_Cg:")
    A("s_mov_b32 s64, 1")
    A(f"s_atomic_add s64, s[26:27], s24 offset:{W_CT} glc")
    budget()
    A("s_waitcnt lgkmcnt(0)")
    A("s_xor_b32 s65, s64, s70"); A("s_lshr_b32 s65, s65, 8"); A("s_cbranch_scc1 L_Cg")
    A("s_and_b32 s64, s64, 0xff"); A("s_mul_i32 s64, s64, 3"); A("s_add_u32 s64, s64, s37"); A(f"s_add_u32 s64, s64, {24*nst}")
    if na:
        A(f"s_lshr_b32 s65, {nax}, s42"); A("s_and_b32 s65, s65, 1"); A(f"s_cselect_b32 s65, {8*na}, 0"); A("s_sub_u32 s65, 120, s65")
        A("s_cmp_lt_u32 s64, s65"); A("s_cbranch_scc1 L_C0")
    else:
        A("s_cmp_lt_u32 s64, 120"); A("s_cbranch_scc1 L_C0")
    A("v_mov_b32 v130, 64"); padd()
    A("s_branch L_fin")
    A("L_C0:")
    A("s_mov_b32 s16, s64")
    if urot: A(f"s_add_u32 s64, s64, {urot}"); A("s_cmp_ge_u32 s64, 120"); A("s_cselect_b32 s65, 120, 0"); A("s_sub_u32 s64, s64, s65")
    comm = not nocomm and not nox
    if stamps: A("s_add_u32 s0, s64, 1"); A(f"v_writelane_b32 v{VST}, s0, 14")
    A("s_lshl_b32 s9, s64, 7"); A("s_add_u32 s9, s9, s101"); A(f"s_add_u32 s17, s9, {GOFF}")
    if f4: A("s_lshl_b32 s9, s64, 4"); A("s_add_u32 s9, s9, s101")
    A("s_lshl_b32 s14, s42, 8")
    A("s_mov_b32 s7, 0x20000")
    A("s_cmp_lt_u32 s64, 64"); A("s_cbranch_scc0 L_CD")
    A("s_and_b32 s67, s64, 48"); A("s_add_u32 s67, s67, s64"); A("s_lshl_b32 s67, s67, 11"); A(f"s_add_u32 s56, s67, {W_XO}")
    A("s_add_u32 s25, s56, s23"); A("s_add_u32 s25, s25, 256"); A(f"s_add_u32 s24, s25, {16*2048}")
    A("s_add_u32 s57, s56, 128"); A(f"s_add_u32 s58, s56, {16*2048}"); A("s_add_u32 s59, s58, 128")
    A("s_mov_b32 s4, s12"); A("s_mov_b32 s5, s13"); A("s_mov_b32 s6, 8388608")
    A("s_mov_b32 s11, 13"); A(f"s_mov_b32 s12, {30 << 11}"); A("s_mov_b32 s60, -1"); A("s_mov_b32 s61, 1")
    for k in range(8): A(f"s_mov_b32 s{72+k}, s{32+(k&3)}")
    A("s_mov_b32 s80, 0xff"); A("s_mov_b32 s81, 0xff"); A("s_mov_b64 s[82:83], s[80:81]"); A("s_mov_b64 s[84:85], s[80:81]"); A("s_mov_b64 s[86:87], s[80:81]")
    A("v_lshlrev_b32 v131, 4, v2")
    A("s_branch L_CE")
    A("L_CD:")
    A("s_sub_u32 s64, s64, 64")
    if gw: A("s_lshr_b32 s25, s64, 1"); A("s_lshl_b32 s25, s25, 10")
    else: A("s_lshl_b32 s25, s64, 10")
    A("s_add_u32 s25, s25, s23"); A(f"s_add_u32 s25, s25, {W_FG}"); A("s_add_u32 s24, s25, 16")
    A("s_lshl_b32 s56, s64, 12"); A(f"s_add_u32 s56, s56, {W_GP}"); A("s_add_u32 s57, s56, 2048"); A("s_add_u32 s58, s56, 1024"); A("s_add_u32 s59, s56, 3072")
    A("s_mov_b32 s4, s20"); A("s_mov_b32 s5, s21"); A("s_mov_b32 s6, 7340032")
    A("s_mov_b32 s11, 14"); A(f"s_mov_b32 s12, {2 << 11}"); A("s_mov_b32 s60, 0xffff")
    A("s_and_b32 s61, s64, 7"); A("s_cmp_eq_u32 s61, 3"); A("s_cselect_b32 s61, -1, 0"); A("s_cmp_eq_u32 s64, 31"); A("s_cselect_b32 s61, -1, s61")
    if gw: A("s_mov_b32 s61, -1")
    for k in range(0, 8, 2): A(f"s_mov_b64 s[{72+k}:{73+k}], s[70:71]")
    A("s_mov_b64 s[80:81], -1"); A("s_mov_b32 s82, -1"); A("s_mov_b32 s83, 0"); A("s_mov_b32 s84, s61"); A("s_mov_b32 s85, s61"); A("s_mov_b32 s86, s61"); A("s_mov_b32 s87, 0")
    if gw: A("s_mov_b32 s61, 0")
    if g4: A("s_bfe_u32 s83, s64, 0x20001"); A("s_cmp_eq_u32 s83, 1"); A("s_cselect_b32 s83, -1, 0"); A("s_cselect_b32 s60, -1, s60"); A("s_mov_b32 s87, s83")
    A("v_lshlrev_b32 v131, 4, v0")
    A("L_CE:")
    def floads():
        A("s_load_dwordx4 s[88:91], s[26:27], s25 glc"); A("s_load_dwordx4 s[92:95], s[26:27], s24 glc")
    def fcheck(wait=True):
        if wait: A("s_waitcnt lgkmcnt(0)")
        for k in range(0, 8, 2): A(f"s_xor_b64 s[{48+k}:{49+k}], s[{88+k}:{89+k}], s[{72+k}:{73+k}]")
        for k in range(0, 8, 2): A(f"s_and_b64 s[{48+k}:{49+k}], s[{48+k}:{49+k}], s[{80+k}:{81+k}]")
        A("s_or_b64 s[48:49], s[48:49], s[50:51]"); A("s_or_b64 s[52:53], s[52:53], s[54:55]"); A("s_or_b64 s[48:49], s[48:49], s[52:53]")
    def xloads():
        lb = lab("X")
        A("s_mov_b32 exec_hi, s60")
        A("buffer_load_dwordx4 v[16:19], v131, s[28:31], s56 offen sc1"); A("buffer_load_dwordx4 v[20:23], v131, s[28:31], s57 offen sc1")
        A("s_cmp_eq_u32 s61, 0"); A(f"s_cbranch_scc1 {lb}")
        A("buffer_load_dwordx4 v[24:27], v131, s[28:31], s58 offen sc1"); A("buffer_load_dwordx4 v[28:31], v131, s[28:31], s59 offen sc1")
        A(f"{lb}:")
        A("s_mov_b32 exec_hi, -1")
    if comm:
        for k in range(0, 8, 2): A(f"s_not_b64 s[{88+k}:{89+k}], s[{72+k}:{73+k}]")
        floads()
    A("s_lshl_b32 s13, s64, 17"); A("s_add_u32 s13, s13, s14")
    A("v_lshlrev_b32 v1, s11, v2"); A("v_add_u32 v1, v1, v3")
    A(f"s_add_u32 s22, s22, {ahead}")
    if pre: A("s_add_u32 s22, s22, s19")
    A("v_lshrrev_b32 v5, 4, v0"); A("v_lshl_add_u32 v137, v5, 14, v3")
    for k in range(0, 16, 2): A(f"v_mov_b64 v[{16+k}:{17+k}], 0")
    A("v_mov_b32 v135, 1"); A("s_mov_b32 s18, 1")
    if comm and usp < 120:
        A(f"s_cmp_ge_u32 s16, {usp}"); A("s_cbranch_scc0 L_C7"); A("s_mov_b32 s18, 2"); xloads(); A("L_C7:")
    for n in range(16):
        if n == 0:
            if na: A("s_cmp_ge_u32 s2, 192"); A("s_cbranch_scc1 L_CL")
            pwait(wsleep, 4)
            if comm and early:
                A("s_cmp_eq_u32 s18, 2"); A("s_cbranch_scc1 L_C6")
                if refl:
                    fcheck(False); A("s_cbranch_scc0 L_C6a"); floads(); A("s_branch L_C6")
                    A("L_C6a:"); A("s_mov_b32 s18, 2"); xloads(); A("L_C6:")
                else:
                    fcheck(False); A("s_cbranch_scc1 L_C6"); A("s_mov_b32 s18, 2"); xloads(); A("L_C6:")
        if n == 8:
            A("s_add_u32 s22, s22, 1")
            pwait(wsleep, 8 if refl else 4)
            if comm:
                A("s_cmp_eq_u32 s18, 2"); A("s_cbranch_scc1 L_C4")
                fcheck(not refl); A("s_cbranch_scc1 L_C4"); A("s_mov_b32 s18, 0"); xloads(); A("L_C4:")
        A(f"buffer_load_dwordx4 v[{64+4*n}:{67+4*n}], v1, s[4:7], s13 offen offset:{((n >> 1) & 1) * 2048 + (n & 1) * 128} {NT}")
        if n == 7: A("s_add_u32 s13, s13, s12")
        elif n & 3 == 3 and n < 15: A("s_add_u32 s13, s13, 4096")
    if na: A("L_CL:")
    if ramp: A(f"s_cmp_eq_u32 s3, {ramp}"); A("s_cbranch_scc0 L_RP"); padd(); A("L_RP:")
    stamp(2)
    A("s_lshl_b32 s14, s3, 7"); A("v_lshlrev_b32 v133, 1, v5"); A("v_add3_u32 v133, v133, v3, s14"); A("v_and_b32 v5, 8, v0"); A("v_add_u32 v133, v133, v5")
    A("v_lshl_add_u32 v134, v2, 4, s14")
    if f4: A("v_lshrrev_b32 v5, 4, v0"); A("v_lshlrev_b32 v136, 7, v3"); A("v_lshl_add_u32 v136, v5, 14, v136")
    if comm:
        A("s_cmp_eq_u32 s18, 1"); A("s_cbranch_scc1 L_V4")
        if usp < 120 or refl: fcheck(); A("s_cbranch_scc1 L_V5")
        A("s_waitcnt lgkmcnt(0)")
        A("s_branch L_V7")
        A("L_V4:")
        A("v_mov_b32 v135, 0")
        if refl:
            fcheck(); A("s_cbranch_scc0 L_V4a")
        floads()
        if mid:
            fcheck(); A("s_cbranch_scc1 L_V4b")
            if refl: A("L_V4a:")
            xloads()
            stamp(8)
            A(f"s_waitcnt vmcnt({10 + tokgap})")
            padd()
            A(f"s_waitcnt vmcnt({2 + tokgap})")
            padd()
            A("s_branch L_V6")
            A("L_V4b:")
            floads()
        A(f"s_waitcnt vmcnt({8 + tokgap})")
        padd()
        fcheck(); A("s_cbranch_scc1 L_V5")
        xloads()
        stamp(8)
        A(f"s_waitcnt vmcnt({2 + tokgap})")
        padd()
        A("s_branch L_V6")
        A("L_V5:")
        floads()
        budget()
        A(f"s_waitcnt vmcnt({tokgap})")
        padd()
        A("s_branch L_V2")
        A("L_V1:")
        if pp:
            floads()
            A(f"s_sleep {pp}")
            budget()
            A("L_V2:")
            fcheck(False); A("s_cbranch_scc1 L_V1")
            xloads()
            A("L_V2b:")
            fcheck(); A("s_cbranch_scc0 L_V2c")
            floads(); budget(); A("s_branch L_V2b")
            A("L_V2c:")
        else:
            if xsleep: A(f"s_sleep {xsleep}")
            floads()
            budget()
            A("L_V2:")
            fcheck(); A("s_cbranch_scc1 L_V1")
            xloads()
        stamp(5)
        A("L_V6:")
        A("v_mov_b32 v130, 0"); A("s_mov_b32 s18, 1")
        A("L_V7:")
        A("s_cmp_eq_u32 s11, 14"); A("s_cbranch_scc1 L_V8")
        A("s_and_b32 s20, s88, 0xffffff00"); A("s_and_b32 s21, s92, 0xffffff00")
        A("v_mov_b32 v32, s20"); A("v_max_f32 v34, s21, v32")
        A("v_sub_f32 v32, v32, v34"); A("v_sub_f32 v33, s21, v34")
        A("v_mul_f32 v32, 0x3fb8aa3b, v32"); A("v_mul_f32 v33, 0x3fb8aa3b, v33")
        A("v_exp_f32 v32, v32"); A("v_exp_f32 v33, v33")
        A("s_xor_b32 s20, s89, s33"); A("s_xor_b32 s21, s93, s33"); A("v_mul_f32 v34, s20, v32"); A("v_fmac_f32 v34, s21, v33"); A("v_rcp_f32 v34, v34")
        A("v_mul_f32 v32, v32, v34"); A("v_mul_f32 v33, v33, v34")
        A("L_V8:")
        A("s_mov_b32 exec_hi, s60")
        A("s_waitcnt vmcnt(16)")
        A("s_cmp_eq_u32 s18, 2"); A("s_cbranch_scc1 L_V9")
        A("s_waitcnt vmcnt(8)")
        A("s_cmp_eq_u32 s18, 0"); A("s_cbranch_scc0 L_V10")
        A("s_mov_b64 exec, 1"); A(f"ds_add_u32 v7, v135 offset:{F_C}"); A("v_mov_b32 v135, 0"); A("s_mov_b32 exec_lo, -1"); A("s_mov_b32 exec_hi, s60")
        A("s_branch L_V9")
        A("L_V10:")
        A("s_waitcnt vmcnt(0)")
        A("L_V9:")
        for k in range(8): A(f"v_xor_b32 v{16+k}, s{32+(k&3)}, v{16+k}")
        A("v_or3_b32 v5, v16, v17, v18"); A("v_or3_b32 v4, v19, v20, v21"); A("v_or3_b32 v5, v5, v22, v23")
        A("s_cmp_eq_u32 s61, 0"); A("s_cbranch_scc1 L_V11")
        for k in range(8): A(f"v_xor_b32 v{24+k}, s{32+(k&3)}, v{24+k}")
        A("v_or3_b32 v5, v5, v24, v25"); A("v_or3_b32 v4, v4, v26, v27"); A("v_or3_b32 v5, v5, v28, v29"); A("v_or3_b32 v4, v4, v30, v31")
        A("L_V11:")
        A("v_bitop3_b32 v5, v5, v4, v6 bitop3:0xa8"); A("v_cmp_ne_u32 vcc, 0, v5")
        A("s_mov_b32 exec_hi, -1")
        A("s_cbranch_vccnz L_V5")
        stamp(6)
        if cprio != 1: A(f"s_setprio {cprio}")
        A("s_cmp_eq_u32 s11, 14"); A("s_cbranch_scc1 L_C3")
        for k in range(4): A(f"v_pk_mul_f32 v[{16+2*k}:{17+2*k}], v[{16+2*k}:{17+2*k}], v[32:33] op_sel_hi:[1,0]")
        if mrg == 0:
            for k in range(4): A(f"v_pk_fma_f32 v[{16+2*k}:{17+2*k}], v[{24+2*k}:{25+2*k}], v[32:33], v[{16+2*k}:{17+2*k}] op_sel:[0,1,0]")
        elif mrg == 1:
            for k in range(8): A(f"v_fmac_f32 v{16+k}, v{24+k}, v33")
        else:
            A("v_mov_b32 v34, v33")
            for k in range(4): A(f"v_pk_fma_f32 v[{16+2*k}:{17+2*k}], v[{24+2*k}:{25+2*k}], v[34:35], v[{16+2*k}:{17+2*k}] op_sel_hi:[1,0,1]")
        for k in range(4): A(f"v_cvt_pk_bf16_f32 v{16+k}, v{16+2*k}, v{17+2*k}")
        A("s_branch L_C5")
        A("L_C3:")
        A("s_cmp_eq_u32 s61, 0"); A("s_cbranch_scc1 L_C3b")
        for j in range(0, 8, 2): A(f"v_pk_add_f32 v[{16+j}:{17+j}], v[{16+j}:{17+j}], v[{24+j}:{25+j}]")
        A("L_C3b:")
        for r in (16, 20): A(f"v_permlane32_swap_b32 v{r}, v{r+2}"); A(f"v_permlane32_swap_b32 v{r+1}, v{r+3}")
        for r in (16, 20): A(f"v_pk_add_f32 v[{r}:{r+1}], v[{r}:{r+1}], v[{r+2}:{r+3}]")
        for r in (16, 20): A(f"v_permlane16_swap_b32 v{r}, v{r+1}")
        for r in (16, 20): A(f"v_add_f32 v{r}, v{r}, v{r+1}")
        A("v_cvt_pk_bf16_f32 v20, v16, v20"); A("v_lshlrev_b32 v16, 16, v20"); A("v_and_b32 v20, 0xffff0000, v20")
        A("v_mul_f32 v16, 0xbfb8aa3b, v16"); A("v_exp_f32 v16, v16"); A("v_add_f32 v16, 1.0, v16"); A("v_rcp_f32 v16, v16")
        bf16r("v16")
        A("v_mul_f32 v16, v16, v20")
        A("v_cvt_pk_bf16_f32 v16, v16, v16")
        A(f"ds_write_b16 v133, v16 offset:{L_H}")
        A(f"ds_read_b128 v[16:19], v134 offset:{L_H}")
        A("s_waitcnt lgkmcnt(0)")
        A("L_C5:")
    stamp(3)
    sel(24, 16, 0)
    for n in range(16):
        t = n >> 1; acc = 56 + 4 * (n & 1)
        if t < 7:
            for d in (0, 1): A(f"v_perm_b32 v{24 + 4*(t+1) + 2*(n&1) + d}, v{16 + ((t+1) >> 1)}, v{16 + ((t+1) >> 1)}, v{8 + 4*((t+1)&1) + 2*(n&1) + d}")
        A(f"s_waitcnt vmcnt({15-n})")
        if lad == 1 and 15 - n in (8 + tokgap, tokgap): A("s_nop 15")
        if 15 - n == 8 + tokgap: A("s_mov_b64 exec, 1"); A(f"ds_add_u32 v7, v135 offset:{F_C}"); A("s_mov_b64 exec, -1")
        if 15 - n == tokgap: padd()
        if lad == 2 and 15 - n in (8 + tokgap, tokgap): A("s_nop 7")
        if lad == 3: A("s_nop 7")
        A(f"v_mfma_f32_16x16x32_bf16 v[{acc}:{acc+3}], v[{24+4*t}:{27+4*t}], v[{64+4*n}:{67+4*n}], {'0' if t == 0 else f'v[{acc}:{acc+3}]'}")
    if lad == 4: A("s_nop 15")
    gemv_epilogue(56)
    A("s_mov_b32 exec_lo, 0x00ff00ff"); A("s_mov_b32 exec_hi, 0x00ff00ff")
    A(f"buffer_store_dwordx4 v[56:59], {'v136' if f4 else 'v137'}, s[28:31], s9 offen {lst}")
    stamp(4)
    if endbar:
        if na: A("s_cmp_ge_u32 s2, 192"); A("s_cbranch_scc1 L_CZ")
        A("s_barrier")
        if na: A("L_CZ:")
    if not nog: A("buffer_store_dwordx4 v[56:59], v137, s[28:31], s17 offen sc1")
    A("s_branch L_fin")

    if na:
        A("L_AC:")
        A("s_mov_b32 s64, s96")
        A("s_lshl_b32 s23, s42, 7")
        A("v_lshrrev_b32 v2, 3, v0"); A("v_and_b32 v3, 7, v0"); A("v_lshlrev_b32 v3, 4, v3"); A("v_mov_b32 v130, 0")
        build_sel()
        A("s_waitcnt vmcnt(0)")
        for k in range(0, 64, 2): A(f"v_mov_b64 v[{64+k}:{65+k}], v[{140+k}:{141+k}]")
        A("s_branch L_C0")
    A("L_Cend:")
    for x in Afirst: A(x)
    A("L_A2:")
    stamp0()
    A("s_load_dword s36, s[26:27], 0"); A("s_mov_b32 s28, s26"); A("s_mov_b32 s29, s27")
    A("s_lshl_b32 s53, s40, 3"); A("s_add_u32 s53, s53, s3")
    A("s_lshl_b32 s55, s53, 4"); A(f"s_and_b32 s56, s43, {qrep-1}"); A("s_add_u32 s55, s55, s56"); A("s_lshl_b32 s55, s55, 7"); A(f"s_add_u32 s55, s55, {W_FQ}")
    A("s_load_dword s72, s[26:27], s55 glc")
    A("v_lshlrev_b32 v134, 4, v0"); A("v_and_b32 v10, 7, v8"); A("v_lshlrev_b32 v135, 4, v10")
    A("s_lshl_b32 s56, s41, 12"); A("s_lshl_b32 s57, s3, 10"); A("s_add_u32 s56, s56, s57"); A("s_add_u32 s56, s56, s101"); A(f"s_add_u32 s56, s56, {O_OP}")
    A("s_lshl_b32 s57, s41, 7"); A("s_add_u32 s57, s57, s101"); A(f"s_add_u32 s57, s57, {O_ML}")
    A("s_lshl_b32 s58, s38, 12"); A("s_lshl_b32 s59, s3, 10"); A("s_add_u32 s58, s58, s59"); A(f"s_add_u32 s58, s58, {W_XO}")
    A("s_cmp_eq_u32 s3, 1"); A("s_cbranch_scc0 L_A3")
    A("s_lshl_b32 s58, s39, 10"); A(f"s_add_u32 s58, s58, {W_FG - 256}")
    A("L_A3:")
    A("s_cmp_ge_u32 s3, 3"); A("s_cbranch_scc1 L_A3b")
    for k in range(8): A(f"s_load_dword s{88+k}, s[26:27], s58 offset:{256 + 128*k} glc")
    A("L_A3b:")
    def prewarm():
        A("s_cmp_ge_u32 s3, 3"); A("s_cbranch_scc1 L_A4")
        A("buffer_load_dwordx4 v[88:91], v134, s[28:31], s56 offen sc1")
        A("buffer_load_dwordx4 v[88:91], v134, s[28:31], s56 offen offset:1024 sc1")
        A("buffer_load_dwordx4 v[88:91], v135, s[28:31], s57 offen sc1")
        A("s_cmp_eq_u32 s3, 1"); A("s_cbranch_scc0 L_A4")
        A("buffer_load_dwordx4 v[88:91], v134, s[28:31], s56 offen offset:2048 sc1")
        A("buffer_load_dwordx4 v[88:91], v134, s[28:31], s56 offen offset:3072 sc1")
        A("L_A4:")
    if not latewarm and not fwarm: prewarm()
    A("v_lshlrev_b32 v5, 1, v10"); A("v_xor_b32 v5, v5, v9"); A("v_lshlrev_b32 v5, 4, v5")
    A("v_lshl_add_u32 v2, v8, 8, v5"); A("v_add_u32 v2, s66, v2")
    A("v_lshrrev_b32 v5, 2, v8"); A("v_lshl_add_u32 v5, v9, 2, v5")
    A("v_and_b32 v11, 7, v5"); A("v_lshlrev_b32 v11, 5, v11"); A("v_and_b32 v12, 3, v8"); A("v_lshl_add_u32 v11, v12, 3, v11")
    A("v_lshl_add_u32 v11, v5, 8, v11"); A(f"s_add_u32 s67, s66, {L_V}"); A("v_add_u32 v11, s67, v11")
    for n in range(TA + adelay, TA + adelay + 2): aload(n)
    A("s_lshl_b32 s67, s41, 3"); A("s_add_u32 s67, s67, s3"); A("s_cmp_eq_u32 s67, 3"); A("s_cbranch_scc0 L_A5")
    A("s_waitcnt lgkmcnt(0)")
    tags(); flagval()
    A("s_and_b32 s67, s70, 0xffffff00"); A("v_mov_b32 v5, s67"); A("s_lshl_b32 s67, s42, 7")
    A("v_lshlrev_b32 v12, 10, v0")
    A("s_mov_b64 exec, 7"); A(f"buffer_store_dword v5, v12, s[28:31], s67 offen offset:{W_CT} sc1"); A("s_mov_b64 exec, -1")
    A("L_A5:")
    A("v_lshrrev_b32 v13, 5, v0"); A("v_and_b32 v14, 31, v0"); A("v_lshlrev_b32 v14, 4, v14"); A("v_lshl_add_u32 v1, v13, 14, v14")
    A("s_lshl_b32 s52, s53, 9"); A(f"s_add_u32 s52, s52, {W_QP}"); A("s_add_u32 s54, s52, 0x8000"); A("s_add_u32 s53, s52, 0x10000")
    A("v_and_b32 v12, 1, v9"); A("v_lshlrev_b32 v12, 7, v12"); A("v_lshl_add_u32 v12, v10, 4, v12")
    A("v_lshrrev_b32 v133, 3, v8"); A("v_lshl_add_u32 v12, v133, 3, v12"); A("v_lshl_add_u32 v12, v13, 2, v12")
    A(f"s_mul_i32 s67, s3, {QS}"); A(f"s_add_u32 s67, s67, {L_Q}"); A("v_add_u32 v12, s67, v12")
    A(f"v_mul_u32_u24 v15, {QS}, v10"); A("v_lshl_add_u32 v15, v9, 4, v15"); A(f"v_add_u32 v15, {L_Q}, v15")
    A(f"v_mul_u32_u24 v128, {OWH}, v10"); A("v_lshl_add_u32 v128, v9, 4, v128"); A("v_lshl_add_u32 v128, v133, 6, v128"); A("v_add_u32 v128, s66, v128")
    A("s_lshl_b32 s67, s3, 3"); A(f"s_add_u32 s67, s67, {L_ML}"); A("v_lshl_add_u32 v129, v10, 6, s67")
    A(f"s_mul_i32 s67, s3, {OWH}"); A("v_lshl_add_u32 v130, v13, 15, v14"); A("v_add_u32 v130, s67, v130")
    A("s_lshl_b32 s67, s3, 6"); A(f"s_add_u32 s67, s67, {L_ML}"); A("v_lshl_add_u32 v131, v13, 5, s67")
    A("s_lshl_b32 s67, s3, 12"); A("s_lshl_b32 s69, s41, 8"); A("s_add_u32 s67, s67, s69"); A("s_add_u32 s67, s67, s101"); A(f"s_add_u32 s67, s67, {O_OP}")
    A("v_lshlrev_b32 v5, 4, v8"); A("v_lshl_add_u32 v132, v9, 11, v5"); A("v_add_u32 v132, s67, v132")
    A("s_lshl_b32 s67, s3, 7"); A("s_lshl_b32 s69, s41, 4"); A("s_add_u32 s67, s67, s69"); A("s_add_u32 s67, s67, s101"); A(f"s_add_u32 s67, s67, {O_ML}")
    A("s_mov_b32 exec_lo, 0"); A("v_mov_b32 v132, s67"); A("s_mov_b32 exec_lo, -1")
    A("v_mov_b32 v136, v134"); A("s_mov_b64 exec, 0xff0000"); A("v_lshlrev_b32 v136, 7, v8"); A("v_add_u32 v136, 256, v136"); A("s_mov_b64 exec, -1")
    for k in range(8): A(f"v_mov_b32 v{112+k}, 0")
    A("v_mov_b32 v122, 0"); A("v_mov_b32 v123, 0")
    if na:
        A("s_sub_u32 s96, s3, 4"); A(f"s_cmp_lt_u32 s96, {na}"); A(f"s_cselect_b32 s97, {nax}, 0"); A("s_lshr_b32 s97, s97, s42")
        A("s_lshl_b32 s96, s96, 3"); A("s_add_u32 s96, s96, s41"); A(f"s_add_u32 s96, s96, {120 - 8*na}")
        A("s_and_b32 s97, s97, 1"); A("s_cselect_b32 s96, s96, 0")
        A("s_sub_u32 s97, s96, 64"); A("s_lshl_b32 s97, s97, 17"); A("s_lshl_b32 s67, s42, 8"); A("s_add_u32 s97, s97, s67")
        A("v_lshrrev_b32 v138, 3, v0"); A("v_lshlrev_b32 v138, 14, v138"); A("v_add_u32 v138, v138, v135")
        srd(12, 20, 7340032)
    RW = 2 if c3 else 1
    if dp1 or dp2:
        if c3: A("v_lshrrev_b32 v138, 3, v0"); A("v_lshl_add_u32 v138, v138, 11, v135"); A("v_add_u32 v138, 128, v138")
        else: A("v_lshlrev_b32 v138, 4, v8"); A("v_lshl_add_u32 v138, v9, 11, v138")
        srd(12, 20, 7340032)
        if c3: A("s_and_b32 s67, s42, 3"); A("s_cmp_eq_u32 s67, 1"); A("s_cselect_b32 s14, s14, 0")
        A("s_lshl_b32 s96, s42, 8")
        A("s_lshl_b32 s97, s41, 3"); A("s_add_u32 s97, s97, s3"); A(f"s_lshl_b32 s97, s97, {12 + RW}"); A("s_add_u32 s97, s97, s96"); A(f"s_add_u32 s97, s97, {(3584 - RW*(128*dp2 + 256*dp1)) * 2048}")
        A("s_lshl_b32 s67, s41, 2"); A("s_add_u32 s67, s67, s3"); A(f"s_lshl_b32 s67, s67, {12 + RW}"); A("s_add_u32 s96, s96, s67"); A(f"s_add_u32 s96, s96, {(3584 - RW*(128*dp2 + 16)) * 2048}")
    A(f"s_mov_b32 s59, {GOFF}"); A("s_mov_b32 s60, 0x3db504f3"); A("s_mov_b32 s62, 0x3fb8aa3b")
    for n in range(TA + adelay + 2, 16):
        aload(n)
        if prof and n in (7, 11): stamp(12 + (7, 11).index(n))
        if atouch and n == TA + 3:
            A("s_mov_b64 exec, 0")
            for k in range(7): A(f"s_cmp_eq_u32 s3, {k}"); A(f"s_cbranch_scc1 TA_{k}")
            A("s_branch TA_7")
            A("L_TAret:")
            A("s_mov_b64 exec, -1")
    A("s_waitcnt lgkmcnt(0)")
    if latewarm and not fwarm: prewarm()
    tags(); flagval()
    if not qw: tagonly(84)
    stamp(1)
    def qloads():
        if qw:
            A("buffer_load_dwordx4 v[80:83], v1, s[28:31], s52 offen sc1"); A("buffer_load_dwordx4 v[84:87], v1, s[28:31], s54 offen sc1")
            A("buffer_load_dwordx4 v[88:91], v1, s[28:31], s53 offen sc1")
            return
        A("buffer_load_dwordx4 v[80:83], v1, s[28:31], s52 offen sc1")
        A("s_mov_b32 exec_hi, 0")
        A("buffer_load_dwordx4 v[84:87], v1, s[28:31], s54 offen sc1")
        A("s_mov_b32 exec_hi, -1")
    def kfrags():
        for t in range(4):
            if t: A(f"v_xor_b32 v5, {t*64}, v2")
            A(f"ds_read_b128 v[{16+4*t}:{19+4*t}], {'v5' if t else 'v2'}")
            A(f"ds_read_b128 v[{32+4*t}:{35+4*t}], {'v5' if t else 'v2'} offset:4096")
    assert TA <= 8
    kfrags()
    lq = lab("H"); l2 = lab("H")
    if not nocomm:
        if qpp:
            A("s_waitcnt lgkmcnt(0)")
            A("s_not_b64 s[88:89], s[70:71]")
            A(f"{lq}:")
            A("s_load_dwordx8 s[88:95], s[26:27], s55 glc")
            A(f"s_sleep {qpp}")
            budget()
            for k in range(0, 6, 2): A(f"s_xor_b64 s[{72+k}:{73+k}], s[{88+k}:{89+k}], s[70:71]")
            for k in range(2, 6, 2): A(f"s_or_b64 s[72:73], s[72:73], s[{72+k}:{73+k}]")
            A(f"s_cbranch_scc1 {lq}")
        else:
            A(f"s_branch {l2}")
            A(f"{lq}:")
            A(f"s_sleep {qsleep}")
            A(f"{l2}:")
            A("s_load_dwordx8 s[72:79], s[26:27], s55 glc")
            budget()
            A("s_waitcnt lgkmcnt(0)")
            for k in range(0, 6, 2): A(f"s_xor_b64 s[{72+k}:{73+k}], s[{72+k}:{73+k}], s[70:71]")
            for k in range(2, 6, 2): A(f"s_or_b64 s[72:73], s[72:73], s[{72+k}:{73+k}]")
            A(f"s_cbranch_scc1 {lq}")
        qloads()
    stamp(11)
    A("L_TA0:")
    A(f"s_waitcnt vmcnt({0 if nocomm else (3 if qw else 2)})")
    stamp(2)
    if nocomm: A("s_branch L_fin")
    for u in range(8):
        if u: A(f"v_xor_b32 v5, {u*32}, v11")
        A(f"ds_read_b64_tr_b16 v[{48+4*u}:{49+4*u}], {'v5' if u else 'v11'}")
        A(f"ds_read_b64_tr_b16 v[{50+4*u}:{51+4*u}], {'v5' if u else 'v11'} offset:4096")
    A("s_waitcnt vmcnt(0)")
    if qw:
        for k in range(12): A(f"v_xor_b32 v{80+k}, s{32+(k&3)}, v{80+k}")
        A("v_or3_b32 v5, v80, v81, v82"); A("v_or3_b32 v92, v83, v84, v85"); A("v_or3_b32 v5, v5, v86, v87"); A("v_or3_b32 v92, v92, v88, v89"); A("v_or3_b32 v5, v5, v90, v91")
        A("v_bitop3_b32 v5, v5, v92, v6 bitop3:0xa8"); A("v_cmp_ne_u32 vcc, 0, v5")
        if not nocomm: A(f"s_cbranch_vccnz {lq}")
        stamp(3)
        for k in (84, 88): A(f"v_pk_add_f32 v[80:81], v[80:81], v[{k}:{k+1}]"); A(f"v_pk_add_f32 v[82:83], v[82:83], v[{k+2}:{k+3}]")
    else:
        tagcheck([80, 84], "v5")
        if not nocomm: A(f"s_cbranch_vccnz {lq}")
        stamp(3)
        untag([80, 84])
        A("v_pk_add_f32 v[80:81], v[80:81], v[84:85]"); A("v_pk_add_f32 v[82:83], v[82:83], v[86:87]")
    A("v_permlane32_swap_b32 v80, v82"); A("v_permlane32_swap_b32 v81, v83")
    A("v_pk_add_f32 v[80:81], v[80:81], v[82:83]")
    A("v_cvt_pk_bf16_f32 v80, v80, v81")
    A("ds_write_b32 v12, v80")
    A("s_waitcnt lgkmcnt(0)")
    A("s_barrier")
    if na:
        A("s_cmp_eq_u32 s96, 0"); A("s_cbranch_scc1 L_AL")
        for n in range(16):
            A(f"buffer_load_dwordx4 v[{140+4*n}:{143+4*n}], v138, s[12:15], s97 offen offset:{((n >> 1) & 1) * 2048 + (n & 1) * 128} {NT}")
            if n & 3 == 3 and n < 15: A("s_add_u32 s97, s97, 4096")
        A("L_AL:")
    if astamp: stamp(10)
    for t in range(4): A(f"ds_read_b128 v[{80+4*t}:{83+4*t}], v15 offset:{64*t}")
    for k in range(dp1):
        A("buffer_load_dwordx4 v[124:127], v138, s[12:15], s97 offen")
        if k < dp1 - 1: A(f"s_add_u32 s97, s97, {RW*256*2048}")
    for t in range(4):
        A(f"s_waitcnt lgkmcnt({3-t})")
        A(f"v_mfma_f32_16x16x32_bf16 v[96:99], v[{16+4*t}:{19+4*t}], v[{80+4*t}:{83+4*t}], {'0' if t == 0 else 'v[96:99]'}")
        A(f"v_mfma_f32_16x16x32_bf16 v[100:103], v[{32+4*t}:{35+4*t}], v[{80+4*t}:{83+4*t}], {'0' if t == 0 else 'v[100:103]'}")
    for j in range(4): A(f"v_mov_b32_dpp v{96+j}, v{100+j} quad_perm:[0,1,2,3] row_mask:0xf bank_mask:0xc")
    def round4():
        for k in range(2): A(f"v_cvt_pk_bf16_f32 v{104+k}, v{96+2*k}, v{97+2*k}")
        for k in range(2):
            A(f"v_lshlrev_b32 v{96+2*k}, 16, v{104+k}"); A(f"v_and_b32 v{97+2*k}, 0xffff0000, v{104+k}")
    round4()
    for k in range(2): A(f"v_pk_mul_f32 v[{96+2*k}:{97+2*k}], v[{96+2*k}:{97+2*k}], s[60:61] op_sel_hi:[1,0]")
    round4()
    A("v_max3_f32 v108, v96, v97, v98"); A("v_max_f32 v108, v108, v99")
    dpp("v_max_f32", "v108", "v108", "v108", 8)
    xrows("v_max_f32", "v108", "v5")
    for k in range(2): A(f"v_pk_add_f32 v[{96+2*k}:{97+2*k}], v[{96+2*k}:{97+2*k}], v[108:109] op_sel_hi:[1,0] neg_lo:[0,1] neg_hi:[0,1]")
    for k in range(2): A(f"v_pk_mul_f32 v[{96+2*k}:{97+2*k}], v[{96+2*k}:{97+2*k}], s[62:63] op_sel_hi:[1,0]")
    for j in range(4): A(f"v_exp_f32 v{96+j}, v{96+j}")
    for k in range(2): A(f"v_cvt_pk_bf16_f32 v{104+k}, v{96+2*k}, v{97+2*k}")
    A("v_pk_add_f32 v[96:97], v[96:97], v[98:99]"); A("v_add_f32 v109, v96, v97")
    for k in range(2): A(f"v_mov_b32_dpp v{112+k}, v{104+k} quad_perm:[0,1,2,3] row_mask:0xf bank_mask:0x3")
    for k in range(2): A(f"v_mov_b32_dpp v{114+k}, v{104+k} row_ror:8 row_mask:0xf bank_mask:0x3")
    for k in range(2): A(f"v_mov_b32_dpp v{116+k}, v{104+k} row_ror:8 row_mask:0xf bank_mask:0xc")
    for k in range(2): A(f"v_mov_b32_dpp v{118+k}, v{104+k} quad_perm:[0,1,2,3] row_mask:0xf bank_mask:0xc")
    if astamp: stamp(12)
    fill = ["v_add_f32_dpp v109, v109, v109 row_ror:8 row_mask:0xf bank_mask:0xf", "v_mov_b32 v5, v109",
            "v_permlane16_swap_b32 v109, v5", "v_add_f32 v109, v109, v5", "v_mov_b32 v5, v109",
            "v_permlane32_swap_b32 v109, v5", "v_add_f32 v109, v109, v5", "ds_write_b64 v129, v[108:109]"]
    for p in range(4):
        A(f"v_mfma_f32_16x16x32_bf16 v[{16+4*p}:{19+4*p}], v[{48+8*p}:{51+8*p}], v[112:115], 0")
        A(fill.pop(0))
        A(f"v_mfma_f32_16x16x32_bf16 v[{16+4*p}:{19+4*p}], v[{52+8*p}:{55+8*p}], v[116:119], v[{16+4*p}:{19+4*p}]")
        A(fill.pop(0))
    for p in range(4):
        A(f"ds_write_b128 v128, v[{16+4*p}:{19+4*p}] offset:{128*p}")
    A("s_waitcnt lgkmcnt(0)")
    if astamp: stamp(13)
    A("s_barrier")
    if astamp: stamp(14)
    A("ds_read_b128 v[64:67], v131"); A("ds_read_b128 v[68:71], v131 offset:16")
    for k in range(4): A(f"ds_read_b128 v[{48+4*k}:{51+4*k}], v130 offset:{8192*k}")
    A("s_waitcnt lgkmcnt(4)")
    A("v_max_f32 v120, v64, v66"); A("v_max3_f32 v120, v120, v68, v70")
    A("v_mov_b32 v5, v120"); A("v_permlane32_swap_b32 v120, v5"); A("v_max_f32 v120, v120, v5")
    for k in range(4): A(f"v_sub_f32 v{64+2*k}, v{64+2*k}, v120")
    for k in range(4): A(f"v_mul_f32 v{64+2*k}, 0x3fb8aa3b, v{64+2*k}")
    for k in range(4): A(f"v_exp_f32 v{64+2*k}, v{64+2*k}")
    A("v_mul_f32 v120, 0.5, v120")
    A("v_mul_f32 v121, v65, v64")
    for k in range(1, 4): A(f"v_fmac_f32 v121, v{65+2*k}, v{64+2*k}")
    A("s_waitcnt lgkmcnt(0)")
    for j in (0, 2): A(f"v_pk_mul_f32 v[{48+j}:{49+j}], v[{48+j}:{49+j}], v[64:65] op_sel_hi:[1,0]")
    for k in range(1, 4):
        for j in (0, 2): A(f"v_pk_fma_f32 v[{48+j}:{49+j}], v[{48+4*k+j}:{49+4*k+j}], v[{64+2*k}:{65+2*k}], v[{48+j}:{49+j}] op_sel_hi:[1,0,1]")
    for j in range(4): A(f"v_permlane32_swap_b32 v{48+j}, v{120+j}")
    for j in (0, 2): A(f"v_pk_add_f32 v[{48+j}:{49+j}], v[{48+j}:{49+j}], v[{120+j}:{121+j}]")
    tagput(48)
    A("s_mov_b32 exec_hi, 1")
    A(f"buffer_store_dwordx4 v[48:51], v132, s[28:31], 0 offen {lst}")
    A("s_mov_b32 exec_hi, -1")
    stamp(4)
    A("s_and_b32 s60, s3, 5"); A("s_cbranch_scc1 L_G")
    A("v_lshlrev_b32 v4, 2, v9")
    local_poll(["buffer_load_dwordx4 v[64:67], v135, s[28:31], s57 offen sc1",
                "buffer_load_dwordx4 v[16:19], v134, s[28:31], s56 offen sc1",
                "buffer_load_dwordx4 v[20:23], v134, s[28:31], s56 offen offset:1024 sc1"], [64, 16, 20], ["s56", "s57"])
    stamp(5)
    A("v_and_b32 v64, 0xffffff00, v64")
    dpp("v_max_f32", "v66", "v64", "v64", 4)
    for k in (2, 1): dpp("v_max_f32", "v66", "v66", "v66", k)
    A("v_sub_f32 v64, v64, v66"); A("v_mul_f32 v64, 0x3fb8aa3b, v64"); A("v_exp_f32 v64, v64")
    A("ds_bpermute_b32 v68, v4, v64"); A("ds_bpermute_b32 v70, v4, v64 offset:16")
    A("v_xor_b32 v65, s33, v65"); untag([16, 20])
    A("v_mul_f32 v67, v65, v64")
    for k in (4, 2, 1): dpp("v_add_f32", "v67", "v67", "v67", k)
    A("s_waitcnt lgkmcnt(0)")
    for j in (0, 2): A(f"v_pk_mul_f32 v[{16+j}:{17+j}], v[{16+j}:{17+j}], v[68:69] op_sel_hi:[1,0]")
    for j in (0, 2): A(f"v_pk_fma_f32 v[{16+j}:{17+j}], v[{20+j}:{21+j}], v[70:71], v[{16+j}:{17+j}] op_sel_hi:[1,0,1]")
    red4rows(16)
    A("v_mov_b32 v17, v16"); A("v_permlane16_swap_b32 v16, v17")
    A("v_mov_b32 v18, v16"); A("v_mov_b32 v19, v17"); A("v_permlane32_swap_b32 v16, v18"); A("v_permlane32_swap_b32 v17, v19")
    A("s_mov_b64 exec, 0xff0000")
    A("v_mov_b64 v[16:17], v[66:67]")
    A("s_mov_b64 exec, 0xffffff")
    tagput(16)
    A("buffer_store_dwordx4 v[16:19], v136, s[28:31], s58 offen sc1")
    A("s_mov_b64 exec, -1")
    stamp(6)
    A("s_cmp_lt_i32 s69, 0"); A("s_cbranch_scc1 L_G2")
    A("L_G:")
    A("s_barrier")
    gstore()
    A("L_G2:")
    if f4:
        if na: A("s_cmp_lg_u32 s96, 0"); A("s_cbranch_scc1 L_AC")
        A("s_cmp_ge_u32 s3, 4"); A("s_cbranch_scc1 L_DP" if dp2 else "s_cbranch_scc1 L_fin")
        A("s_lshl_b32 s56, s41, 2"); A("s_add_u32 s56, s56, s3")
        A("s_lshl_b32 s57, s42, 7"); A("s_and_b32 s58, s56, 16"); A("s_lshl_b32 s58, s58, 2"); A("s_add_u32 s57, s57, s58")
        A("s_and_b32 s58, s56, 7"); A("s_lshl_b32 s60, s58, 3"); A("s_add_u32 s57, s57, s60"); A("s_bfe_u32 s60, s56, 0x10003"); A("s_lshl_b32 s60, s60, 2"); A("s_add_u32 s57, s57, s60")
        A("v_add_lshl_u32 v3, v9, s57, 1")
        A("global_load_ushort v40, v3, s[4:5]")
        srd(52, 22, 2048)
        A("buffer_load_ushort v41, v3, s[52:55], 0 offen")
        A("s_lshl_b32 s60, s56, 11"); A("s_add_u32 s60, s60, s101"); A("s_add_u32 s61, s60, 1024")
        A("s_lshr_b32 s62, s56, 3"); A("s_lshl_b32 s62, s62, 14"); A("s_lshl_b32 s58, s58, 4"); A("s_add_u32 s62, s62, s58"); A("s_add_u32 s62, s62, s101"); A(f"s_add_u32 s62, s62, {GOFF}")
        for j in range(4): A(f"v_mov_b32 v{24+j}, 0")
        A("s_lshl_b32 s58, s42, 5"); A("s_add_u32 s56, s56, s58"); A("s_lshr_b32 s56, s56, 1"); A("s_and_b32 s58, s3, 1"); A("s_cselect_b32 s56, s56, 0")
        if f2:
            for j in range(4): A(f"v_mov_b32 v{28+j}, 0")
            def fl(o):
                A(f"buffer_load_dwordx4 v[{16+o}:{19+o}], v134, s[28:31], s60 offen sc1")
                A("s_mov_b32 exec_hi, 0xffffff")
                A(f"buffer_load_dwordx4 v[{24+o}:{27+o}], v134, s[28:31], s61 offen sc1")
            def fc(o):
                A("s_waitcnt vmcnt(2)")
                for j in range(4): A(f"v_xor_b32 v{24+o+j}, s{32+j}, v{24+o+j}")
                A("s_mov_b32 exec_hi, -1")
                for j in range(4): A(f"v_xor_b32 v{16+o+j}, s{32+j}, v{16+o+j}")
                A(f"v_or3_b32 v5, v{24+o}, v{25+o}, v{26+o}"); A(f"v_or3_b32 v4, v{27+o}, v{16+o}, v{17+o}"); A(f"v_or3_b32 v5, v5, v{18+o}, v{19+o}")
                A("v_bitop3_b32 v5, v5, v4, v6 bitop3:0xa8"); A("v_cmp_ne_u32 vcc, 0, v5")
            A(f"s_mov_b32 s69, {3 * locn}")
            fl(0); A("s_mov_b32 exec_hi, -1"); A("s_sleep 2")
            A("L_F1:")
            fl(4)
            fc(0)
            A("s_cbranch_vccz L_F3")
            budget()
            A("s_sub_u32 s69, s69, 1"); A("s_cbranch_scc0 L_F2")
            A("v_lshlrev_b32 v134, 7, v0"); A("s_mov_b32 s60, s62"); A("s_add_u32 s61, s62, 8192")
            A("L_F2:")
            fl(0)
            fc(4)
            A("s_cbranch_vccnz L_F1")
            for j in range(4): A(f"v_permlane32_swap_b32 v{20+j}, v{28+j}")
            for j in (0, 2): A(f"v_pk_add_f32 v[{32+j}:{33+j}], v[{20+j}:{21+j}], v[{28+j}:{29+j}]")
            A("s_branch L_F4")
            A("L_F3:")
            for j in range(4): A(f"v_permlane32_swap_b32 v{16+j}, v{24+j}")
            for j in (0, 2): A(f"v_pk_add_f32 v[{32+j}:{33+j}], v[{16+j}:{17+j}], v[{24+j}:{25+j}]")
            A("L_F4:")
        else:
            l = lab("G"); l2 = lab("G")
            A(f"s_mov_b32 s69, {3 * locn}")
            A(f"{l}:")
            A("buffer_load_dwordx4 v[16:19], v134, s[28:31], s60 offen sc1")
            A("s_mov_b32 exec_hi, 0xffffff")
            A("buffer_load_dwordx4 v[24:27], v134, s[28:31], s61 offen sc1")
            budget()
            A("s_sub_u32 s69, s69, 1"); A(f"s_cbranch_scc0 {l2}")
            A("s_mov_b32 exec_hi, -1"); A("v_lshlrev_b32 v134, 7, v0"); A("s_mov_b32 exec_hi, 0xffffff"); A("s_mov_b32 s60, s62"); A("s_add_u32 s61, s62, 8192")
            A(f"{l2}:")
            A("s_waitcnt vmcnt(0)")
            for j in range(4): A(f"v_xor_b32 v{24+j}, s{32+j}, v{24+j}")
            A("s_mov_b32 exec_hi, -1")
            for j in range(4): A(f"v_xor_b32 v{16+j}, s{32+j}, v{16+j}")
            A("v_or3_b32 v5, v24, v25, v26"); A("v_or3_b32 v4, v27, v16, v17"); A("v_or3_b32 v5, v5, v18, v19")
            A("v_bitop3_b32 v5, v5, v4, v6 bitop3:0xa8"); A("v_cmp_ne_u32 vcc, 0, v5")
            A(f"s_cbranch_vccnz {l}")
        stamp(8)
        fr0 = len(L)
        if not f2:
            for j in range(4): A(f"v_permlane32_swap_b32 v{16+j}, v{24+j}")
            for j in (0, 2): A(f"v_pk_add_f32 v[{16+j}:{17+j}], v[{16+j}:{17+j}], v[{24+j}:{25+j}]")
        A("v_lshlrev_b32 v40, 16, v40")
        A("v_permlane16_swap_b32 v16, v17"); A("v_permlane16_swap_b32 v18, v19")
        A("v_add_f32 v16, v16, v17"); A("v_add_f32 v18, v18, v19")
        for k in (8, 4, 2, 1):
            dpp("v_add_f32", "v16", "v16", "v16", k); dpp("v_add_f32", "v18", "v18", "v18", k)
        A("v_permlane32_swap_b32 v16, v18")
    else:
        A("s_and_b32 s57, s3, 5"); A("s_cbranch_scc1 L_fin")
        A("s_lshl_b32 s56, s38, 1"); A("s_lshr_b32 s57, s3, 1"); A("s_add_u32 s56, s56, s57")
        A("s_lshr_b32 s57, s56, 3"); A("s_lshl_b32 s57, s57, 6"); A("s_and_b32 s58, s56, 3"); A("s_lshl_b32 s58, s58, 4"); A("s_add_u32 s57, s57, s58")
        A("s_and_b32 s58, s56, 4"); A("s_add_u32 s57, s57, s58")
        A("v_and_b32 v5, 1, v0"); A("v_lshl_add_u32 v3, v5, 3, v9"); A("v_add_lshl_u32 v3, v3, s57, 1")
        A("global_load_ushort v40, v3, s[4:5]")
        srd(52, 22, 2048)
        A("buffer_load_ushort v41, v3, s[52:55], 0 offen")
        A("v_lshrrev_b32 v4, 1, v0"); A("v_lshlrev_b32 v4, 7, v4"); A("v_lshl_add_u32 v4, v5, 4, v4")
        A("s_lshr_b32 s60, s41, 1"); A("s_lshl_b32 s60, s60, 14"); A("s_and_b32 s61, s56, 3"); A("s_lshl_b32 s61, s61, 5"); A("s_add_u32 s60, s60, s61"); A("s_add_u32 s60, s60, s101")
        A("s_add_u32 s61, s60, 4096"); A("s_add_u32 s62, s60, 8192"); A("s_add_u32 s63, s60, 12288")
        tagonly(28)
        if fsleep:
            l = lab("H")
            A("s_and_b32 s59, s56, 63"); A("s_lshl_b32 s59, s59, 7"); A("s_add_u32 s59, s59, s60")
            A(f"{l}:")
            A(f"s_sleep {fsleep}")
            A("s_load_dword s72, s[26:27], s59 glc")
            budget()
            A("s_waitcnt lgkmcnt(0)")
            A("s_xor_b32 s72, s72, s32"); A("s_and_b32 s72, s72, 0xff")
            A(f"s_cbranch_scc1 {l}")
            stamp(13)
        l = lab("G")
        A(f"s_mov_b32 s69, {2 * locn}")
        A(f"{l}:")
        for k in range(3): A(f"buffer_load_dwordx4 v[{16+4*k}:{19+4*k}], v4, s[28:31], s{60+k} offen sc1")
        A("s_mov_b32 exec_hi, 0xffff")
        A("buffer_load_dwordx4 v[28:31], v4, s[28:31], s63 offen sc1")
        A("s_mov_b32 exec_hi, -1")
        budget()
        A("s_sub_u32 s69, s69, 1"); A(f"s_cselect_b32 s59, {GOFF}, 0"); A("v_add_u32 v4, s59, v4")
        A("s_waitcnt vmcnt(0)")
        tagcheck([16, 20, 24, 28], "v5")
        A(f"s_cbranch_vccnz {l}")
        stamp(8)
        untag([16, 20, 24, 28])
        A("v_pk_add_f32 v[16:17], v[16:17], v[20:21]"); A("v_pk_add_f32 v[18:19], v[18:19], v[22:23]")
        A("v_pk_add_f32 v[24:25], v[24:25], v[28:29]"); A("v_pk_add_f32 v[26:27], v[26:27], v[30:31]")
        for j in range(4): A(f"v_permlane32_swap_b32 v{16+j}, v{24+j}")
        for j in (0, 2): A(f"v_pk_add_f32 v[{16+j}:{17+j}], v[{16+j}:{17+j}], v[{24+j}:{25+j}]")
        A("v_permlane16_swap_b32 v16, v17"); A("v_permlane16_swap_b32 v18, v19")
        A("v_add_f32 v16, v16, v17"); A("v_add_f32 v18, v18, v19")
        for k in (8, 4, 2):
            dpp("v_add_f32", "v16", "v16", "v16", k); dpp("v_add_f32", "v18", "v18", "v18", k)
        A("v_lshlrev_b32 v40, 16, v40")
        A("v_permlane32_swap_b32 v16, v18")
    A("v_cvt_pk_bf16_f32 v16, v18, v16"); A("v_lshlrev_b32 v18, 16, v16"); A("v_and_b32 v16, 0xffff0000, v16")
    A("v_mul_f32 v17, 0xbfb8aa3b, v18"); A("v_exp_f32 v17, v17"); A("v_add_f32 v17, 1.0, v17"); A("v_rcp_f32 v17, v17")
    A("v_mul_f32 v17, v17, v18"); bf16r("v17")
    A("v_mul_f32 v16, v16, v17"); bf16r("v16")
    A("v_add_f32 v16, v16, v40")
    A("v_cvt_pk_bf16_f32 v16, v16, v16")
    m = "0x00010001" if f4 else "0x00030003"
    A(f"s_mov_b32 exec_lo, {m}"); A(f"s_mov_b32 exec_hi, {m}")
    A(f"buffer_store_short v16, v3, s[52:55], 0 offen {outsc}")
    if f2:
        import re as _re
        L[fr0:] = [_re.sub(r"\bv(16|17|18|19)\b", lambda m: f"v{int(m.group(1)) + 16}", x) for x in L[fr0:]]
    A("s_cmp_lg_u32 s56, 127"); A("s_cbranch_scc1 L_fin0")
    A("s_add_u32 s36, s36, 1"); A("v_mov_b32 v5, s36")
    A("s_mov_b64 exec, 1")
    A(f"buffer_store_dword v5, v7, s[28:31], 0 offen {outsc}")
    A("L_fin0:")
    stamp(9)
    if dp2:
        A("s_branch L_fin")
        A("L_DP:")
        for k in range(dp2):
            if k >= dpw: A(f"s_waitcnt vmcnt({dpw-1})")
            A("buffer_load_dwordx4 v[124:127], v138, s[12:15], s96 offen")
            if k < dp2 - 1: A(f"s_add_u32 s96, s96, {RW*128*2048}")
    A("L_fin:")
    if probe is not None:
        A(f"v_readfirstlane_b32 s3, v{VST+2}"); A(f"v_readfirstlane_b32 s4, v{VST}"); A(f"v_readfirstlane_b32 s5, v{VST+1}")
        A(f"s_cmp_lg_u32 s3, {probe[1]}"); A("s_cbranch_scc1 L_end")
        if agg is not None:
            A("s_mov_b64 exec, 1"); A("s_lshl_b32 s6, s2, 7"); A("s_add_u32 s6, s6, 0x8000000"); A("v_mov_b32 v2, s6")
            A(f"global_store_dword v2, v{VST}, s[26:27] sc1"); A("s_waitcnt vmcnt(0)")
        A(f"s_cmp_lg_u32 s2, {probe[0]}"); A("s_cbranch_scc1 L_end")
        if agg is not None:
            A("L_spin0:")
            A("s_memrealtime s[0:1]"); A("s_waitcnt lgkmcnt(0)"); A("s_sub_u32 s6, s0, s5"); A("s_cmp_lt_u32 s6, 2000"); A("s_cbranch_scc1 L_spin0")
            A("s_add_u32 s26, s26, 0x8000000"); A("s_addc_u32 s27, s27, 0")
            lo, n, op = agg
            A(f"s_mov_b32 s7, {lo*128}"); A(f"s_load_dword s4, s[26:27], s7 glc"); A("s_waitcnt lgkmcnt(0)")
            A("L_mm:")
            A("s_load_dword s8, s[26:27], s7 glc"); A("s_waitcnt lgkmcnt(0)"); A(f"s_{op}_u32 s4, s4, s8")
            A("s_add_u32 s7, s7, 128"); A(f"s_cmp_lt_u32 s7, {(lo+n)*128}"); A("s_cbranch_scc1 L_mm")
        A("s_sub_u32 s4, s4, s5"); A("s_min_u32 s4, s4, 3000"); A("s_lshl_b32 s4, s4, 4"); A("s_add_u32 s4, s4, 3000")
        A("L_spin:")
        A("s_memrealtime s[0:1]"); A("s_waitcnt lgkmcnt(0)"); A("s_sub_u32 s6, s0, s5"); A("s_cmp_lt_u32 s6, s4"); A("s_cbranch_scc1 L_spin")
    if stamps:
        A("s_waitcnt vmcnt(0)")
        stamp(7)
        A("s_getreg_b32 s0, hwreg(HW_REG_HW_ID)"); A(f"v_writelane_b32 v{VST}, s0, 15")
        A("s_mov_b64 exec, -1")
        A(f"v_readfirstlane_b32 s3, v{VST+2}")
        A("s_lshl_b32 s4, s2, 3"); A("s_add_u32 s4, s4, s3"); A("s_lshl_b32 s4, s4, 7")
        A("s_add_u32 s26, s26, s4"); A("s_addc_u32 s27, s27, 0"); A(f"s_add_u32 s26, s26, {STAMP_OFF}"); A("s_addc_u32 s27, s27, 0")
        A("v_lshlrev_b32 v2, 3, v0")
        A("s_mov_b64 exec, 0xffff")
        A(f"global_store_dwordx2 v2, v[{VST}:{VST+1}], s[26:27]")
    A("L_end:")
    A("s_endpgm")
    A(".p2align 6")
    A(".fill 256, 4, 0xbf810000")
    A("L_codeend:")
    nv = 256 if diag else max(RING + 4 * NR, 204 if na else 140)
    A('.section .rodata,"a"'); A(".p2align 6"); A(f".amdhsa_kernel {NAME}_kernel")
    A(f"  .amdhsa_next_free_vgpr {nv}"); A("  .amdhsa_next_free_sgpr 102"); A(f"  .amdhsa_accum_offset {(nv+3)//4*4}")
    A("  .amdhsa_group_segment_fixed_size 0"); A("  .amdhsa_kernarg_size 96"); A("  .amdhsa_user_sgpr_count 2")
    A("  .amdhsa_user_sgpr_kernarg_segment_ptr 1"); A("  .amdhsa_system_sgpr_workgroup_id_x 1"); A(".end_amdhsa_kernel")
    if strip:
        i0 = L.index("L_S:"); i1 = L.index("L_C:")
        body = L[i0:i1]
        if "l" in strip:
            a = next(k for k, x in enumerate(body) if x.startswith("v_dot2")); b = next(k for k, x in enumerate(body) if x.startswith("s_load_dword s36"))
            body = body[:a] + [x for x in body[a:b] if x.endswith(":") or x.startswith(("buffer_", "s_add_u32 s64", "s_memreal", "s_waitcnt lgkm", "v_writelane", "s_barrier"))] + body[b:]
        if "p" in strip: body = [x for x in body if not x.startswith(("v_perm_b32", "v_mfma"))]
        L = L[:i0] + body + L[i1:]
    L = fix(L)
    def isz(x):
        x = x.split(";")[0].strip()
        if not x or x.endswith(":") or x.startswith("."): return 0
        op = x.split()[0]
        if op.startswith(("buffer_", "global_", "ds_", "s_load", "v_mfma", "v_perm_", "v_pk_", "v_bitop", "v_bfi", "v_cvt_pk", "v_lshl_add", "v_max3", "v_dot2", "v_bfe", "v_add_lshl", "s_memreal", "v_writelane")) or "_dpp" in op or "0x" in x: return 8
        return 4
    def chain(L, name, l0, l1, step, nw, ret):
        i0 = L.index(l0); i1 = L.index(l1)
        out = L[:i0 + 1]; acc = step; k = 0
        body = []
        for x in L[i0 + 1:i1]:
            if acc >= step and isz(x):
                body.append(("pad", k)); k += 1; acc = 4
            body.append(x); acc += isz(x)
        for x in body:
            if isinstance(x, tuple):
                j = x[1]
                out.append(f"{name}{j}:"); out.append(f"s_cbranch_execz {name + str(j + nw) if j + nw < k else ret}")
            else: out.append(x)
        return out + L[i1:]
    if touch: L = chain(L, "TS_", "L_TS0:", "L_C:", touch, 7, "L_TSret")
    if atouch: L = chain(L, "TA_", "L_TA0:", "L_fin0:", atouch, 8, "L_TAret")
    if ctouch: L = chain(L, "TC_", "L_TC0:", "L_Cend:", ctouch, 1, "L_TCret")
    if ep:
        from align8 import sizes, is_ins
        for k in range(ep):
            T_ = [x for x in L if not (x.startswith("s_cbranch_scc1 L_ep") and int(x[-1]) >= k)]
            T_ = [("s_nop 0" if (x.startswith("s_cbranch_scc1 L_ep") and int(x[-1]) >= k) else x) for x in L]
            i0 = T_.index(NAME + "_kernel:")
            idx = [j for j in range(i0, len(T_)) if is_ins(T_[j])]
            sz = sizes(HEADER + "\n".join(T_) + "\n", NAME + "_kernel")
            a = 0
            for j, z in zip(idx, sz):
                if a >= 1152 * (k + 1): break
                a += z
            L[j:j] = [f"s_branch L_epx{k}", f"L_ep{k}:", "s_branch L_Cbar", f"L_epx{k}:"]
    if sord:
        i0 = L.index("L_S:"); i1 = L.index("L_C:"); k = i0
        while k < i1:
            if L[k] in ("s_add_u32 s64, s64, s65", "s_add_u32 s66, s66, s67"):
                j = k + 1
                while L[j].startswith("v_perm_b32"): j += 1
                if j > k + 1 and L[j].startswith("s_waitcnt vmcnt"):
                    x = L.pop(k); L.insert(j - 1, x); k = j
            k += 1
    if al8:
        from align8 import align
        L, st = align(L, HEADER, NAME + "_kernel", al8)
        print("align8", st)
    return HEADER + "\n".join(L) + "\n"

if __name__ == "__main__":
    for spec in sys.argv[1:]:
        name, _, kw = spec.partition(":")
        kw = eval("dict(" + kw + ")")
        open(name + ".s", "w").write(gen(**kw))
```

```python
import sys
from hazard import fix
NAME = "recurrent_scan__sliding_block_cached__glu_gated_glu__decode"
HEADER = open("cdna_kernels/" + NAME + ".s.ref").read().split("; Override launch")[0]

L_K = 0; L_V = 65536; L_Q = 131072; QS = 288; L_ML = L_Q + 8 * QS
OWH = 528
LDS_SIZE = L_ML + 512
L_XT = 0; XTS = 96; F_C = 1024; F_E = 1028; F_V = 1032; L_H = 2048
W_CT = 0x400
W_FQ = 0x4000
W_QP = 0x14000
W_XO = W_QP + 6 * 0x4000
W_GP = W_XO + 128 * 2048
W_FG = W_GP + 64 * 4096
W_LOC = W_FG + 64 * 1024
LS = 0x19000
O_SP = 0
O_OP = 0x10000
O_ML = 0x18000
GOFF = 8 * LS
W_END = W_LOC + 2 * GOFF
STAMP_OFF = 128 << 20
NQ = 43
DOC = """
One persistent launch, one workgroup per CU; b = workgroup id, x = b&7, i = (b>>3)&7, ks = b>>6.
 ks < 3 (192 streaming workgroups)
   wave 0   : layernorm, then streams a 344 x 64 tile of wq and a 344 (or 256) x 128 tile of w_gate or w_up through a register ring; GEMV by MFMA
              (A operand = x placed on a diagonal selector, B operand = the weights as loaded); publishes partial sums.
   waves 1-7: pull V, the code and the hand-off lines towards L2, then take 64-row x 128-column units of wo / w_down (three static, the rest from a counter),
              fetch o (two partial softmax sources, merged here) or gate/up partials (h computed here), GEMV, publish partial rows.
 ks == 3 (64 attention workgroups, 256 keys each)
   K / V -> LDS, q gather, scores rounded to bf16 as the reference does, online softmax with the true max, PV, combine over the
   waves, over the 8 workgroups of the group x, publish (o, max, sum); waves 0-3 then reduce the partial rows and write the output.
Hand-offs: every dword carries a tag byte derived from an epoch word in d_ws (bumped once per launch), so stale or foreign bytes never pass.
Hand-offs inside a group x are first looked for in a copy written with plain stores (fast when the group shares an XCD); a coherent
copy is always written too and is used after a bounded number of misses, so the result does not depend on placement. All spins are bounded.
"""
def gen(T=18, T2=30, T3=16, TC=6, TA=4, NT="nt", stamps=False, prefetch=True, nocomm=False, tokgap=2, csleep=2, g0=0, gstep=2,
        astamp=False, locn=200, qsleep=2, outsc="", probe=None, afirst=False, hstamp=False, latewarm=True, kvi=2,
        fsite=10, xsite=13, sptok=(0, 0), xsleep=1, bal=True, touch=0, atouch=0, ctouch=0, agg=None, vpf=1, vfl='', nox=False, T0=24, ahead=3, spst=10, wsleep=1, nst=3, qrep=4, fwarm=True, win=4, latebar=False, latesetup=True, amove=False, xmode='s', prof=False, noqpub=False, vtlb=0, rk=2, rs=4, ifirst=False, qg=99, kill='', lni=0, w1=False, adelay=4, early=True, usp=120, endbar=True, clean=True, lad=0, mrg=1, f4=True, urot=0, mid=True, na=0, nax=0xff, lst='', nog=False, strip='', gw=True, lwin=3, pre=0, vgate=-1, vfrom=71, wst=False, wfrom=0, pp=0, qpp=0, f2=False, ramp=0, dp2=0, dp1=0, dpw=4, lafter=0, sprio=2, cprio=1, refl=False, c3=True, g4=True, hn=(3,1,2,2,2,0,2,2), qw=False, eoff=0, vearly=1, ksplit=True, al8=0, sord=False, ee=0, ep=0, late=None, v21=True, sfl=-1, at=2, aprio=0, qdip=0):
    pads = False; tlb = False; fsleep = 0
    L = []
    A = L.append
    T0 = T0 or T
    NR = max(T, T2, T0 + lni) + (2 if ifirst else 0)
    labn = [0]
    VST = 250
    diag = stamps or probe is not None
    def lab(p="L"):
        labn[0] += 1
        return f"{p}_{labn[0]}"
    def stamp(i):
        if probe is not None and probe[2] == i:
            A("s_memrealtime s[0:1]"); A("s_waitcnt lgkmcnt(0)"); A(f"v_mov_b32 v{VST}, s0")
        if stamps:
            A("s_memrealtime s[0:1]"); A("s_waitcnt lgkmcnt(0)"); A(f"v_writelane_b32 v{VST}, s0, {i}")
    def stamp0():
        if probe is not None: A(f"v_mov_b32 v{VST+1}, s98"); A(f"v_mov_b32 v{VST}, s98")
        if stamps: A(f"v_writelane_b32 v{VST}, s98, 0")
    def budget():
        A("s_sub_u32 s100, s100, 1")
        A("s_cbranch_scc1 L_fin")
    def tagcheck(regsets, acc):
        first = True
        for r in regsets:
            for j in range(4):
                if first:
                    A(f"v_xor_b32 {acc}, s{32+j}, v{r+j}"); first = False
                else:
                    A(f"v_bitop3_b32 {acc}, {acc}, v{r+j}, s{32+j} bitop3:0xf6")
        A(f"v_and_b32 {acc}, 0xff, {acc}"); A(f"v_cmp_ne_u32 vcc, 0, {acc}")
    def untag(regsets):
        if clean:
            for r in regsets:
                for j in range(4): A(f"v_xor_b32 v{r+j}, s{32+j}, v{r+j}")
    def tagput(r, vm="v6", rnd=False):
        if rnd and clean:
            for j in range(4): A(f"v_add_u32 v{r+j}, 0x80, v{r+j}")
        for j in range(4):
            A(f"v_bfi_b32 v{r+j}, {vm}, s{32+j}, v{r+j}")
    def tagonly(r):
        for j in range(4): A(f"v_and_b32 v{r+j}, s{32+j}, v6")
    def dpp(op, d, a, b, k, bank=0xf):
        A(f"{op}_dpp {d}, {a}, {b} row_ror:{k} row_mask:0xf bank_mask:{hex(bank)}")
    def xrows(op, v, t):
        A(f"v_mov_b32 {t}, {v}"); A(f"v_permlane16_swap_b32 {v}, {t}"); A(f"{op} {v}, {v}, {t}")
        A(f"v_mov_b32 {t}, {v}"); A(f"v_permlane32_swap_b32 {v}, {t}"); A(f"{op} {v}, {v}, {t}")
    def srd(d, p, size):
        A(f"s_mov_b32 s{d}, s{p}"); A(f"s_mov_b32 s{d+1}, s{p+1}"); A(f"s_mov_b32 s{d+2}, {size}"); A(f"s_mov_b32 s{d+3}, 0x20000")
    def build_sel():
        A("v_and_b32 v5, 1, v0"); A("v_cmp_eq_u32 vcc, 1, v5")
        A("v_mov_b32 v24, 0x0c0c0100"); A("v_mov_b32 v25, 0x01000c0c"); A("v_mov_b32 v26, 0x0c0c0302"); A("v_mov_b32 v27, 0x03020c0c")
        A("v_cndmask_b32 v24, v24, v25, vcc"); A("v_cndmask_b32 v26, v26, v27, vcc")
        A("v_bfe_u32 v5, v0, 1, 2"); A("v_mov_b32 v25, 0x0c0c0c0c")
        for d in range(4):
            A(f"v_cmp_eq_u32 vcc, {d}, v5")
            A(f"v_cndmask_b32 v{8+d}, v25, v24, vcc"); A(f"v_cndmask_b32 v{12+d}, v25, v26, vcc")
    def sel(dst, xreg, half):
        for d in range(4):
            A(f"v_perm_b32 v{dst+d}, v{xreg}, v{xreg}, v{8+4*half+d}")
    def pad(k):
        if pads:
            A(f"s_branch L_padx{k}"); A(f"L_pad{k}:"); A("s_branch L_Cbar"); A(f"L_padx{k}:")
    def flagval():
        A("s_mul_i32 s70, s36, 0x01010101"); A("s_add_u32 s70, s70, 0x3c6ef301"); A("s_mov_b32 s71, s70")
    def bf16r(v):
        A(f"v_cvt_pk_bf16_f32 {v}, {v}, {v}"); A(f"v_and_b32 {v}, 0xffff0000, {v}")
    def red4rows(r):
        A(f"v_permlane32_swap_b32 v{r}, v{r+2}"); A(f"v_permlane32_swap_b32 v{r+1}, v{r+3}")
        A(f"v_add_f32 v{r}, v{r}, v{r+2}"); A(f"v_add_f32 v{r+1}, v{r+1}, v{r+3}")
        A(f"v_permlane16_swap_b32 v{r}, v{r+1}")
        A(f"v_add_f32 v{r}, v{r}, v{r+1}")
    def tags():
        A("s_add_u32 s32, s36, 1"); A("s_add_u32 s33, s36, 38"); A("s_add_u32 s34, s36, 75"); A("s_add_u32 s35, s36, 112")
        for j in range(4): A(f"s_and_b32 s{32+j}, s{32+j}, 0xff")
    def gemv_epilogue(acc, rnd=False):
        for j in range(4): A(f"v_permlane32_swap_b32 v{acc+j}, v{acc+4+j}")
        for j in range(4): dpp("v_add_f32", f"v{acc+j}", f"v{acc+4+j}", f"v{acc+j}", 8)
        tagput(acc, rnd=rnd)
    def gstore():
        A("s_mov_b32 exec_hi, 1")
        if not nog: A("buffer_store_dwordx4 v[48:51], v132, s[28:31], s59 offen sc1")
        A("s_mov_b32 exec_hi, -1")
    def local_poll(loads, regsets, bases):
        l = lab("P"); l2 = lab("P")
        A(f"s_mov_b32 s69, {locn}")
        if hstamp:
            stamp(10); A("s_waitcnt vmcnt(0)"); stamp(12)
        A(f"{l}:")
        for x in loads: A(x)
        budget()
        A("s_sub_u32 s69, s69, 1"); A(f"s_cbranch_scc0 {l2}")
        for b in bases: A(f"s_add_u32 {b}, {b}, {GOFF}")
        A("s_barrier")
        gstore()
        A(f"{l2}:")
        A("s_waitcnt vmcnt(0)")
        tagcheck(regsets, "v5")
        A(f"s_cbranch_vccnz {l}")

    A(f"; @launch grid=(256,1,1) block=(512,1,1) lds={LDS_SIZE}")
    for c in DOC.strip("\n").split("\n"): A("; " + c)
    A('.amdgcn_target "amdgcn-amd-amdhsa--gfx950"')
    A(".text")
    A(f".globl {NAME}_kernel")
    if eoff is not None:
        A("; keep the entry near the start of a 4 KB page: the instruction prefetch does not cross pages")
        A(".p2align 12"); A(f".fill {((eoff - 0x300) % 4096) // 4}, 4, 0xbf810000")
    A(".p2align 8")
    A(f".type {NAME}_kernel,@function")
    A(f"{NAME}_kernel:")
    if diag: A("s_memrealtime s[98:99]")
    if ksplit:
        A("s_load_dwordx16 s[4:19], s[0:1], 0")
        A("s_load_dwordx8 s[20:27], s[0:1], 64")
        A("s_cmpk_ge_u32 s2, 0x100")
        A("s_cbranch_scc1 L_end")
    else:
        A("s_cmp_ge_u32 s2, 256")
        A("s_cbranch_scc1 L_end")
        A("s_load_dwordx16 s[4:19], s[0:1], 0")
        A("s_load_dwordx8 s[20:27], s[0:1], 64")
    if late:
        A(f"s_cmp_lg_u32 s2, {late[0]}"); A("s_cbranch_scc1 L_nl"); A(f"s_mov_b32 s90, {late[1]}")
        A("L_ll:"); A("s_sleep 100"); A("s_sub_u32 s90, s90, 1"); A("s_cbranch_scc0 L_ll"); A("L_nl:")
    A("v_lshrrev_b32 v1, 6, v0")
    A("v_and_b32 v0, 63, v0")
    A("v_readfirstlane_b32 s3, v1")
    if diag: A(f"v_mov_b32 v{VST}, 0"); A(f"v_mov_b32 v{VST+1}, 0"); A(f"v_mov_b32 v{VST+2}, v1")
    if afirst: A("s_add_u32 s2, s2, 192"); A("s_and_b32 s2, s2, 255")
    A("s_lshr_b32 s37, s2, 6")
    A("s_and_b32 s42, s2, 7")
    A("s_bfe_u32 s41, s2, 0x30003")
    A("s_lshl_b32 s38, s42, 3"); A("s_add_u32 s38, s38, s41")
    A("s_sub_u32 s39, s38, s42")
    A("s_mov_b32 s100, 400000"); A(f"s_mul_i32 s101, s42, {LS}"); A(f"s_add_u32 s101, s101, {W_LOC}")
    A("s_mov_b32 s47, 0x20000"); A(f"s_mov_b32 s30, {W_END}"); A("s_mov_b32 s31, 0x20000")
    A("v_lshrrev_b32 v2, 3, v0"); A("v_and_b32 v3, 7, v0"); A("v_lshlrev_b32 v3, 4, v3")
    A("v_mov_b32 v6, 0xff"); A("v_mov_b32 v7, 0")
    A("s_cmp_eq_u32 s37, 3")
    A("s_cbranch_scc1 L_end" if "A" in kill else "s_cbranch_scc1 L_A")
    if "S" in kill: A("s_endpgm")
    A("s_cmp_eq_u32 s3, 0")
    A("s_cbranch_scc1 L_S")
    for k in range(ep):
        A(f"s_cmp_eq_u32 s3, {6 - k}"); A(f"s_cbranch_scc1 L_ep{k}")
    if prefetch:
        A("s_cmp_eq_u32 s3, 7")
        A("s_cbranch_scc0 L_Cbar")
        A("s_getpc_b64 s[66:67]")
        A("L_pc:")
        A("s_lshr_b32 s65, s2, 3")
        A("s_cmp_ge_u32 s65, (L_codeend - L_pc) / 1024")
        A("s_cbranch_scc1 L_Cbar")
        A("s_lshl_b32 s65, s65, 10")
        A("s_add_u32 s66, s66, s65"); A("s_addc_u32 s67, s67, 0")
        A("v_lshlrev_b32 v20, 4, v0"); A("v_mov_b32 v21, s67")
        A("v_add_co_u32 v20, vcc, s66, v20"); A("v_addc_co_u32 v21, vcc, 0, v21, vcc")
        A("global_load_dwordx4 v[64:67], v[20:21], off")
    def vcode():
        if not vpf: return
        if v21:
            A("s_mul_i32 s64, s37, 7"); A("s_add_u32 s64, s64, s41"); A("s_lshr_b32 s65, s41, 2"); A("s_sub_u32 s64, s64, s65")
            A("s_cmp_eq_u32 s41, 3"); A("s_cselect_b32 s64, 100, s64")
        else:
            A("s_lshl_b32 s64, s37, 3"); A("s_add_u32 s64, s64, s41")
        A("s_mul_i32 s64, s64, 7"); A("s_add_u32 s64, s64, s3"); A("s_sub_u32 s64, s64, 1")
        A("s_lshr_b32 s65, s42, 1"); A("s_lshl_b32 s65, s65, 24"); A("s_and_b32 s66, s42, 1"); A("s_lshl_b32 s66, s66, 19"); A("s_add_u32 s65, s65, s66"); A(f"s_add_u32 s65, s65, {61440*256}")
        A("s_mov_b32 s50, 67108864"); A("s_mov_b32 s51, 0x20000"); A("v_lshlrev_b32 v4, 4, v0")
        A("s_waitcnt lgkmcnt(0)")
        A("s_mov_b32 s48, s8"); A("s_mov_b32 s49, s9")
        if vfrom: A(f"s_add_u32 s64, s64, {vfrom}")
        if vgate >= 0:
            A("L_VG:")
            A(f"ds_read_b32 v5, v7 offset:{F_V}"); A("s_sleep 2"); budget(); A("s_waitcnt lgkmcnt(0)")
            A("v_cmp_ne_u32 vcc, 0, v5"); A("s_cbranch_vccz L_VG")
        if vearly == 1: A("s_barrier")
        if v21: A("s_cmp_ge_u32 s64, 512"); A("s_cbranch_scc1 L_C")
        A("L_V0:")
        A("s_bfe_u32 s66, s64, 0x30003"); A("s_lshr_b32 s67, s64, 6"); A("s_and_b32 s68, s64, 7")
        if kvi == 2: A("s_and_b32 s69, s66, 1"); A("s_lshl_b32 s69, s69, 2"); A("s_xor_b32 s67, s67, s69")
        if kvi == 3:
            A(f"s_mul_i32 s69, s66, {rs}"); A("s_add_u32 s67, s67, s69"); A("s_lshr_b32 s69, s42, 1"); A(f"s_mul_i32 s69, s69, {rk}"); A("s_add_u32 s67, s67, s69"); A("s_and_b32 s67, s67, 7")
        A("s_lshl_b32 s66, s66, 16"); A("s_lshl_b32 s67, s67, 13"); A("s_lshl_b32 s68, s68, 10")
        A("s_add_u32 s66, s66, s67"); A("s_add_u32 s66, s66, s68"); A("s_add_u32 s66, s66, s65")
        A(f"s_waitcnt vmcnt({vpf-1})")
        A(f"buffer_load_dwordx4 v[64:67], v4, s[48:51], s66 offen {vfl}")
        A(f"s_add_u32 s64, s64, {147 if v21 else 168}"); A("s_cmp_lt_u32 s64, 512"); A("s_cbranch_scc1 L_V0")
    A("L_Cbar:")
    if vearly: vcode()
    else: A("s_barrier")
    A("s_branch L_C")
    if tlb:
        A("L_TLB:")
        A("s_and_b32 s64, s41, 3"); A("s_lshl_b32 s64, s64, 21")
        A("s_lshr_b32 s65, s42, 1"); A("s_lshl_b32 s65, s65, 24"); A("s_add_u32 s65, s65, 0xf00000")
        A("s_waitcnt lgkmcnt(0)")
        A("s_cmp_ge_u32 s41, 4"); A("s_cbranch_scc1 L_TLB2")
        A("s_load_dword s70, s[10:11], s64"); A("s_load_dword s71, s[16:17], s64"); A("s_load_dword s72, s[18:19], s64")
        A("s_endpgm")
        A("L_TLB2:")
        A("s_load_dword s70, s[12:13], s64"); A("s_load_dword s71, s[20:21], s64"); A("s_load_dword s72, s[22:23], 0"); A("s_load_dword s73, s[26:27], 0x800"); A("s_load_dword s74, s[8:9], s65")
        A("s_endpgm")
    a0 = len(L)
    A("L_A:")
    A("s_lshr_b32 s40, s38, 4"); A("s_and_b32 s43, s38, 15")
    A("s_lshl_b32 s64, s40, 24"); A("s_lshl_b32 s65, s43, 16"); A("s_add_u32 s64, s64, s65")
    A("s_lshl_b32 s66, s3, 13")
    if kvi == 3:
        A("s_lshl_b32 s65, s3, 10"); A("s_add_u32 s64, s64, s65"); A(f"s_add_u32 s64, s64, {61440*256}")
        A(f"s_mul_i32 s65, s40, {rk}"); A(f"s_mul_i32 s67, s43, {rs}"); A("s_add_u32 s65, s65, s67"); A("s_lshl_b32 s65, s65, 13")
        for j in range(4):
            A(f"s_and_b32 s67, s65, 0xe000"); A(f"s_add_u32 s{80+2*j}, s64, s67"); A(f"s_xor_b32 s67, s67, 0x8000"); A(f"s_add_u32 s{81+2*j}, s64, s67")
            if j < 3: A("s_addk_i32 s65, 0x2000"); A("s_addk_i32 s64, -1024")
        A("s_mov_b64 s[64:65], s[80:81]")
    elif kvi:
        A("s_lshl_b32 s65, s3, 10"); A("s_add_u32 s64, s64, s65"); A(f"s_add_u32 s64, s64, {61440*256}")
        if kvi == 2: A("s_and_b32 s65, s43, 1"); A("s_lshl_b32 s65, s65, 15"); A("s_add_u32 s64, s64, s65")
        A("s_xor_b32 s65, s64, 0x8000")
        for k in range(1, 4): A(f"s_add_u32 s{80+2*k}, s64, {7168*k}"); A(f"s_add_u32 s{81+2*k}, s65, {7168*k}")
    else:
        A("s_add_u32 s64, s64, s66"); A(f"s_add_u32 s64, s64, {61440*256}"); A("s_add_u32 s65, s64, 4096")
    A("v_lshrrev_b32 v9, 4, v0"); A("v_and_b32 v8, 15, v0"); A("v_lshlrev_b32 v4, 1, v9"); A("v_xor_b32 v3, v8, v4")
    A("v_lshlrev_b32 v3, 4, v3"); A("v_lshl_add_u32 v3, v9, 8, v3"); A("v_xor_b32 v4, 0x80, v3")
    A("s_mov_b32 s46, 67108864"); A("s_mov_b32 s50, 67108864"); A("s_mov_b32 s51, 0x20000")
    A("s_mov_b32 m0, s66")
    A("s_waitcnt lgkmcnt(0)")
    A("s_mov_b32 s44, s6"); A("s_mov_b32 s45, s7"); A("s_mov_b32 s48, s8"); A("s_mov_b32 s49, s9")
    def aload(n):
        isv = n >> 3; j = n & 7
        if n and j & 3 == 0: A(f"s_add_u32 m0, s66, {isv * L_V + (j >> 2) * 4096}")
        if n >= TA: A(f"s_waitcnt vmcnt({TA-1})")
        sr = 48 if isv else 44
        so = 64 + (j >> 2) if (j & 3 == 0 or not kvi) else 80 + 2 * (j & 3) + (j >> 2)
        A(f"buffer_load_dwordx4 v{3 + (j & 1)}, s[{sr}:{sr+3}], s{so} offen offset:{(j & 3) * 1024} {NT} lds")
    for n in range(TA + adelay): aload(n)
    Afirst = []
    if amove: Afirst = L[a0:]; del L[a0:]
    else: A("s_branch L_A2")

    A("L_S:")
    A(f"s_setprio {sprio}")
    A("v_lshl_add_u32 v1, v2, 13, v3")
    A(f"s_mul_i32 s64, s37, {344*8192}"); A("s_lshl_b32 s65, s38, 7"); A("s_add_u32 s64, s64, s65")
    if qw: A("s_and_b32 s43, s41, 1"); A(f"s_mul_i32 s65, s43, {176*8192 - 128}"); A("s_add_u32 s64, s64, s65")
    A("s_mov_b32 s46, 8388608"); A("s_mov_b32 s65, 0x10000")
    A("v_lshlrev_b32 v4, 5, v0"); A("s_mul_i32 s66, s37, 688"); A("v_lshlrev_b32 v59, 4, v0"); A("v_add_u32 v5, s66, v59")
    A("s_mov_b32 s50, 2048"); A("s_mov_b32 s51, 0x20000")
    if prof: A("s_memrealtime s[94:95]")
    A("s_waitcnt lgkmcnt(0)")
    if prof: A("s_memrealtime s[96:97]")
    if ee == 2: A("s_load_dword s36, s[26:27], 0")
    A("s_mov_b32 s48, s4"); A("s_mov_b32 s49, s5")
    A("s_mov_b32 s44, s10"); A("s_mov_b32 s45, s11")
    A("buffer_load_dwordx4 v[16:19], v4, s[48:51], 0 offen")
    A("buffer_load_dwordx4 v[20:23], v4, s[48:51], 0 offen offset:16")
    A("buffer_load_dwordx4 v[48:51], v5, s[48:51], 0 offen")
    RING = 80 if qw else 68; XR = 16; AB = 40; ACC = 48; XQ = 68
    NG = 43
    NQ = 44 if qw else 43
    NL = NQ + 2 * NG
    def xreg(t): return XR + ((t >> 1) if (t < 22 or not qw) else 12 + ((t - 22) >> 1))
    vm = []
    def wait_for(idx):
        k = vm.index(idx)
        A(f"s_waitcnt vmcnt({len(vm)-1-k})")
    def rset(n): return RING + 4 * (n % NR)
    nxt = [0]; lim = [NL]
    def issue():
        n = nxt[0]
        if n >= lim[0]: return
        nxt[0] += 1
        r = rset(n)
        if n < NQ:
            if qw:
                if n == 40: A("v_add_u32 v1, s81, v1")
                A(f"buffer_load_dwordx4 v[{r}:{r+3}], {'v56' if n >= NQ-2 else 'v1'}, s[44:47], s64 offen offset:{128 * (n & 1)} {NT}")
                if n & 1 and n < NQ - 1: A("s_add_u32 s64, s64, s65")
            else:
                A(f"buffer_load_dwordx4 v[{r}:{r+3}], {'v56' if n == NQ-1 else 'v1'}, s[44:47], s64 offen {NT}")
                if n < NQ - 1: A("s_add_u32 s64, s64, s65")
        else:
            m = n - NQ
            sr = 60 if (m & 1 and not gw) else 56
            if g4 and m == 64: A("v_add_u32 v2, s75, v2")
            if lim[0] < NL and m == 36: A("v_add_u32 v2, s76, v2")
            if lim[0] < NL and m == 38: A("v_add_u32 v2, s75, v2")
            A(f"buffer_load_dwordx4 v[{r}:{r+3}], {'v57' if m >= 2*NG-2 else 'v2'}, s[{sr}:{sr+3}], s66 offen offset:{128 * (m & 1) if gw else 0} {NT}")
            if (m & 1) and m < 2 * NG - 1: A("s_add_u32 s66, s66, s67")
        vm.append(n)
    for n in range(T0): issue()
    stamp0()
    stamp(1)
    if prof: A(f"v_writelane_b32 v{VST}, s96, 6"); A(f"v_writelane_b32 v{VST}, s94, 14")
    A(f"ds_write_b32 v7, v7 offset:{F_C}")
    if vgate >= 0: A(f"ds_write_b32 v7, v7 offset:{F_V}")
    if not latebar and not ep: A("s_waitcnt lgkmcnt(0)"); A("s_barrier")
    if ee == 1: A("s_load_dword s36, s[26:27], 0")
    A(f"v_mul_u32_u24 v4, {XTS}, v2")
    build_sel()
    def setup2():
        A("s_mov_b32 s28, s26"); A("s_mov_b32 s29, s27")
        srd(56, 16, 7340032); srd(60, 18, 7340032)
        if gw:
            A("s_cmp_gt_u32 s41, 3"); A("s_cselect_b32 s79, 1, 0"); A("s_sub_u32 s39, s39, s79")
            A("s_mov_b32 s74, s37"); A("s_mov_b32 s77, 0")
            A("s_cmp_eq_u32 s41, 3"); A("s_cbranch_scc0 L_g1")
            A("s_mov_b32 s77, 3")
            if g4:
                if hn is None:
                    A("s_mul_i32 s79, s42, 3"); A("s_add_u32 s79, s79, s37")
                else:
                    assert sum(hn) == 14
                    tab = [[15] * 8 for _ in range(3)]; g = 0
                    for x_ in range(8):
                        for k in range(hn[x_]): tab[(k + x_) % 3][x_] = g; g += 1
                    c = [sum(v << (4 * x_) for x_, v in enumerate(r)) for r in tab]
                    A(f"s_mov_b32 s79, {hex(c[0])}"); A("s_cmp_eq_u32 s37, 1"); A(f"s_cselect_b32 s79, {hex(c[1])}, s79"); A("s_cmp_eq_u32 s37, 2"); A(f"s_cselect_b32 s79, {hex(c[2])}, s79")
                    A("s_lshl_b32 s78, s42, 2"); A("s_lshr_b32 s79, s79, s78"); A("s_and_b32 s79, s79, 15")
                A("s_cmp_lt_u32 s79, 14"); A("s_cbranch_scc0 L_g1")
                A("s_mov_b32 s77, 0"); A("s_mov_b32 s74, 3")
                A("s_and_b32 s39, s79, 14"); A("s_lshl_b32 s39, s39, 2"); A("s_and_b32 s79, s79, 1"); A("s_add_u32 s39, s39, s79"); A("s_add_u32 s39, s39, 2")
            A("L_g1:")
            A("s_and_b32 s78, s39, 1"); A("s_cselect_b32 s56, s18, s16"); A("s_cselect_b32 s57, s19, s17")
            A("s_lshr_b32 s39, s39, 1")
            A("s_cmp_eq_u32 s77, 3"); A("s_cselect_b32 s58, 0, s58")
            A("s_mov_b32 s75, 0"); A("s_mul_i32 s76, s74, 344")
            if g4:
                A("s_lshl_b32 s79, s74, 8"); A("s_and_b32 s67, s39, 3"); A("s_cmp_eq_u32 s67, 1"); A("s_cselect_b32 s75, 0x40000000, 0"); A("s_cselect_b32 s76, s79, s76")
                A("s_lshl_b32 s79, s76, 1"); A("v_lshlrev_b32 v5, 4, v0"); A("v_add_u32 v5, s79, v5")
                A("buffer_load_dwordx4 v[60:63], v5, s[48:51], 0 offen"); vm.append("x2")
            A("s_mul_i32 s66, s76, 7168"); A("s_lshl_b32 s67, s39, 8"); A("s_add_u32 s66, s66, s67"); A(f"s_mov_b32 s67, {8*7168}")
        else:
            A("s_add_u32 s78, s42, 3"); A("s_and_b32 s78, s78, 7"); A("s_cmp_eq_u32 s78, 7"); A("s_cselect_b32 s78, 3, s78")
            A("s_cmp_eq_u32 s41, s78"); A("s_cselect_b32 s79, 3, s41")
            A("s_and_b32 s77, s41, 3"); A("s_cmp_eq_u32 s77, 3"); A("s_cselect_b32 s79, s78, s79")
            A("s_sub_u32 s39, s39, s41"); A("s_add_u32 s39, s39, s79")
            A("s_mul_i32 s76, s37, 344")
            A("s_cmp_eq_u32 s41, 7"); A("s_cselect_b32 s74, 4, 0"); A("s_cselect_b32 s75, 0x40000000, 0"); A("s_cselect_b32 s79, 192, 0")
            A("s_add_u32 s74, s74, s37"); A("s_add_u32 s76, s76, s79")
            A("s_mul_i32 s66, s76, 7168"); A("s_lshl_b32 s67, s39, 7"); A("s_add_u32 s66, s66, s67"); A(f"s_mov_b32 s67, {8*7168}")
        A("v_mul_u32_u24 v5, 7168, v2"); A("v_add_u32 v2, v5, v3")
        A("s_cmp_eq_u32 s37, 2"); A("s_cselect_b32 s68, 0x40000000, 0")
        A("s_and_b32 s76, s68, s75")
        if qw: A("s_lshl_b32 s80, s43, 30"); A("s_and_b32 s81, s80, s68"); A("v_add_u32 v56, s80, v1")
        else: A("v_add_u32 v56, s68, v1")
        if g4: A("s_or_b32 s68, s68, s75")
        A("v_add_u32 v57, s68, v2")
        A("v_bfe_u32 v5, v0, 4, 1"); A("v_lshl_add_u32 v3, v5, 7, v3"); A("v_lshrrev_b32 v5, 5, v0")
        if qw: A("v_lshl_add_u32 v65, v5, 8, v3")
        A(f"v_lshl_add_u32 v3, v5, {12 if gw else 11}, v3")
        if qw:
            A("s_lshl1_add_u32 s82, s37, s43"); A("s_lshl_b32 s68, s82, 14"); A("s_lshr_b32 s69, s38, 1"); A("s_lshl_b32 s69, s69, 9"); A("s_add_u32 s68, s68, s69"); A(f"s_add_u32 s68, s68, {W_QP}")
        else:
            A("s_lshl_b32 s68, s37, 14"); A("s_lshl_b32 s69, s38, 8"); A("s_add_u32 s68, s68, s69"); A(f"s_add_u32 s68, s68, {W_QP}")
        if gw:
            A("s_lshl_b32 s69, s39, 13"); A("s_lshl_b32 s70, s78, 11"); A("s_add_u32 s69, s69, s70"); A("s_lshl_b32 s70, s74, 8"); A("s_add_u32 s69, s69, s70"); A(f"s_add_u32 s69, s69, {W_GP}")
            A("s_lshl_b32 s73, s39, 10"); A("s_lshl_b32 s70, s78, 4"); A("s_add_u32 s73, s73, s70"); A("s_lshl_b32 s70, s74, 2"); A("s_add_u32 s73, s73, s70"); A(f"s_add_u32 s73, s73, {W_FG}")
        else:
            A("s_lshl_b32 s69, s39, 12"); A("s_lshl_b32 s70, s74, 8"); A("s_add_u32 s69, s69, s70"); A(f"s_add_u32 s69, s69, {W_GP}")
            A("s_lshl_b32 s73, s39, 10"); A("s_lshl_b32 s70, s74, 2"); A("s_add_u32 s73, s73, s70"); A(f"s_add_u32 s73, s73, {W_FG}")
        A("v_mov_b32 v58, 1")
        A("s_lshr_b32 s72, s38, 1"); A("s_lshl_b32 s72, s72, 11"); A("s_and_b32 s70, s38, 1"); A("s_mul_i32 s70, s70, 3"); A("s_add_u32 s70, s70, s37")
        A("s_lshl_b32 s70, s70, 2"); A("s_add_u32 s72, s72, s70"); A(f"s_add_u32 s72, s72, {W_FQ}")
    if not latesetup: setup2()
    if ep: A("s_waitcnt lgkmcnt(0)"); A("s_barrier")
    A("s_mov_b32 s71, 0x3f803f80")
    A("v_lshlrev_b32 v59, 1, v0")
    if qw:
        A("v_cmp_le_u32 vcc, 22, v0"); A("s_mul_i32 s66, s43, 48"); A("v_add_u32 v58, s66, v4"); A("v_cndmask_b32 v5, 0, 4, vcc"); A("v_add_u32 v59, v59, v5")
    pad(2)
    A(f"s_waitcnt vmcnt({len(vm)})")
    stamp(5)
    if not latebar: A("L_TS0:")
    ln0 = len(L)
    A("v_dot2_f32_bf16 v64, v16, s71, 0"); A("v_dot2_f32_bf16 v65, v17, s71, 0")
    for i in range(2, 8, 2):
        A(f"v_dot2_f32_bf16 v64, v{16+i}, s71, v64"); A(f"v_dot2_f32_bf16 v65, v{17+i}, s71, v65")
    unp = []
    for i in range(8):
        unp.append(f"v_lshlrev_b32 v{24+2*i}, 16, v{16+i}"); unp.append(f"v_and_b32 v{25+2*i}, 0xffff0000, v{16+i}")
    def U(k):
        for _ in range(k):
            if unp: A(unp.pop(0))
    U(3)
    A("v_add_f32 v64, v64, v65")
    for k in (8, 4, 2, 1):
        U(2); dpp("v_add_f32", "v64", "v64", "v64", k)
    A("v_mov_b32 v65, v64"); U(2); A("v_permlane16_swap_b32 v64, v65"); A("v_add_f32 v64, v64, v65")
    A("v_mov_b32 v65, v64"); U(3); A("v_permlane32_swap_b32 v64, v65"); A("v_add_f32 v64, v64, v65")
    A("v_mul_f32 v64, 0x3a800000, v64")
    for i in range(8):
        A(f"v_pk_add_f32 v[{24+2*i}:{25+2*i}], v[{24+2*i}:{25+2*i}], v[64:65] op_sel_hi:[1,0] neg_lo:[0,1] neg_hi:[0,1]")
    A("v_pk_mul_f32 v[66:67], v[24:25], v[24:25]"); A("v_pk_mul_f32 v[44:45], v[26:27], v[26:27]")
    for i in range(2, 8, 2):
        A(f"v_pk_fma_f32 v[66:67], v[{24+2*i}:{25+2*i}], v[{24+2*i}:{25+2*i}], v[66:67]")
        A(f"v_pk_fma_f32 v[44:45], v[{26+2*i}:{27+2*i}], v[{26+2*i}:{27+2*i}], v[44:45]")
    A("v_pk_add_f32 v[66:67], v[66:67], v[44:45]"); A("v_add_f32 v66, v66, v67")
    def center(src):
        r = []
        for i in range(4):
            r.append(f"v_lshlrev_b32 v{24+2*i}, 16, v{src+i}"); r.append(f"v_and_b32 v{25+2*i}, 0xffff0000, v{src+i}")
        for i in range(4):
            r.append(f"v_pk_add_f32 v[{24+2*i}:{25+2*i}], v[{24+2*i}:{25+2*i}], v[64:65] op_sel_hi:[1,0] neg_lo:[0,1] neg_hi:[0,1]")
        for i in range(4): r.append(f"v_cvt_pk_bf16_f32 v{src+i}, v{24+2*i}, v{25+2*i}")
        for i in range(4):
            r.append(f"v_lshlrev_b32 v{24+2*i}, 16, v{src+i}"); r.append(f"v_and_b32 v{25+2*i}, 0xffff0000, v{src+i}")
        return r
    def scale_store(src, first=False):
        for i in range(4):
            A(f"v_pk_mul_f32 v[{24+2*i}:{25+2*i}], v[{24+2*i}:{25+2*i}], v[66:67] op_sel_hi:[1,0]")
        for i in range(4): A(f"v_cvt_pk_bf16_f32 v{src+i}, v{24+2*i}, v{25+2*i}")
        A(f"s_mov_b32 exec_hi, {'0x3fff' if qw else '0xffff'}")
        for i in range(4):
            A(f"ds_write_b16 v59, v{src+i} offset:{L_XT + XTS*2*i}"); A(f"ds_write_b16_d16_hi v59, v{src+i} offset:{L_XT + XTS*(2*i+1)}")
        A("s_mov_b32 exec_hi, -1")
        if first and qw:
            for i in range(3): A(f"ds_read_b128 v[{XQ+4*i}:{XQ+3+4*i}], v58 offset:{L_XT + 16*i}")
        for i in range(6): A(f"ds_read_b128 v[{XR+4*i}:{XR+3+4*i}], v4 offset:{L_XT + 16*i}")
        A(f"s_waitcnt lgkmcnt({6 if (first and qw and not diag) else 0})")
    pad(3)
    unp += ["v_cvt_pk_bf16_f32 v64, v64, v64", "v_and_b32 v64, 0xffff0000, v64"] + center(48)
    for k in (8, 4, 2, 1):
        U(2); dpp("v_add_f32", "v66", "v66", "v66", k)
    A("v_mov_b32 v67, v66"); U(2); A("v_permlane16_swap_b32 v66, v67"); A("v_add_f32 v66, v66, v67")
    A("v_mov_b32 v67, v66"); U(2); A("v_permlane32_swap_b32 v66, v67"); A("v_add_f32 v66, v66, v67")
    A("v_mul_f32 v66, 0x3a800000, v66")
    bf16r("v66")
    A("v_add_f32 v66, 0x3727c5ac, v66"); bf16r("v66")
    A("v_sqrt_f32 v66, v66"); U(1); bf16r("v66")
    A("v_rcp_f32 v66, v66")
    U(99)
    if lni:
        body = L[ln0:]; del L[ln0:]
        gap = len(body) // lni
        for k, x in enumerate(body):
            A(x)
            if k % gap == gap - 1 and nxt[0] < T0 + lni: issue()
        T0 = nxt[0]
    scale_store(48, True)
    if latebar: A("s_barrier"); A("L_TS0:")
    stamp(2)
    if ee == 0: A("s_load_dword s36, s[26:27], 0")
    def token(k=1):
        if k != 1: A(f"v_mov_b32 v58, {k}")
        A("s_mov_b64 exec, 1"); A(f"ds_add_u32 v7, v58 offset:{F_C}"); A("s_mov_b64 exec, -1")
    XB = XQ if qw else XR
    sel(AB, XB, 0)
    for n in range(NQ):
        t = n >> 1 if qw else n
        a = AB + 4 * (t & 1); acc = ACC + (4 * (n & 1) if qw else 0)
        if (not qw or n & 1 == 0) and t + 1 < (22 if qw else NQ): sel(AB + 4 * ((t + 1) & 1), XB + ((t + 1) >> 1), (t + 1) & 1)
        if n == 10 and latesetup: setup2()
        if ee > 2 and n == ee: A("s_load_dword s36, s[26:27], 0")
        if n == vgate: A(f"ds_write_b32 v7, v6 offset:{F_V}")
        if n == NQ - 4:
            A("s_waitcnt lgkmcnt(0)")
            tags(); flagval()
            A("v_mov_b32 v5, s36"); A(f"ds_write_b32 v7, v5 offset:{F_E}"); A("v_mov_b32 v1, s70"); A("v_lshlrev_b32 v56, 7, v0")
        wait_for(n)
        r = rset(n)
        A(f"v_mfma_f32_16x16x32_bf16 v[{acc}:{acc+3}], v[{a}:{a+3}], v[{r}:{r+3}], {'0' if t == 0 else f'v[{acc}:{acc+3}]'}")
        if n >= T0 - T and not (NQ - T <= n < NQ - T + qdip): issue()
        if n >= qg and nxt[0] - (n + 1) < T2: issue()
        if prof and n in (10, 21, 32): stamp(8 + (10, 21, 32).index(n))
    gemv_epilogue(ACC, True)
    A("s_mov_b32 exec_lo, 0x00ff00ff"); A(f"s_mov_b32 exec_hi, {'0x00ff00ff' if qw else 0}")
    if not noqpub: A(f"buffer_store_dwordx4 v[{ACC}:{ACC+3}], {'v65' if qw else 'v3'}, s[28:31], s68 offen sc1"); vm.append("pubq")
    A(f"s_mov_b64 exec, {(1 << qrep) - 1}")
    if not noqpub and sfl < 0: A("buffer_store_dword v1, v56, s[28:31], s72 offen sc1"); vm.append("flagq")
    def sflags():
        for k in range(qrep): A(f"s_atomic_swap s70, s[26:27], s72 offset:{128*k}")
    if sfl == 0: sflags()
    A("s_mov_b64 exec, -1")
    stamp(3)
    def gphase(steps, W, early, lefts):
        lim[0] = NQ + 2 * steps
        sel(AB, XR, 0)
        grow = W - (nxt[0] - NQ)
        lefts = list(lefts)
        all_lefts = list(lefts)
        if lafter: lefts = lefts[:-lafter]
        for t in range(steps):
            if sfl > 0 and t == sfl - 1: sflags()
            if g4 and t == 32: A("s_cmp_lg_u32 s75, 0"); A("s_cbranch_scc1 L_S3")
            for e in early:
                if e == t: token()
            a = AB + 4 * (t & 1)
            if t + 1 < steps: sel(AB + 4 * ((t + 1) & 1), xreg(t + 1), (t + 1) & 1)
            for m in range(2):
                n = NQ + 2 * t + m
                if not w1: wait_for(n)
                elif m == 0: wait_for(n + 1)
                r = rset(n); acc = ACC + 4 * m
                if ifirst and grow >= 0: issue()
                A(f"v_mfma_f32_16x16x32_bf16 v[{acc}:{acc+3}], v[{a}:{a+3}], v[{r}:{r+3}], {'0' if t == 0 else f'v[{acc}:{acc+3}]'}")
                if grow < 0: grow += 1
                elif not ifirst: issue()
                if t >= g0 and (m == 1 or gstep > 1):
                    for _ in range(max(1, gstep // 2)):
                        if grow > 0: issue(); grow -= 1
                if prof and m == 1 and t in (10, 21, 32): stamp(11 + (10, 21, 32).index(t))
                left = lim[0] - 1 - n
                if g4 and left in [x + 24 for x in all_lefts[:sum(1 for y in all_lefts if y < 22)]]:
                    lb = lab("T"); A("s_cmp_eq_u32 s75, 0"); A(f"s_cbranch_scc1 {lb}"); token(); A(f"{lb}:")
                while lefts and left <= lefts[0]:
                    token(); lefts.pop(0)
    A("s_cmp_eq_u32 s77, 3")
    A("s_cbranch_scc0 L_S2")
    if gw:
        token(ahead + lwin)
        if sfl > 1: A("s_waitcnt vmcnt(0)")
        if sfl > 0: sflags()
        A("s_branch L_fin")
    else:
        A("s_cmp_eq_u32 s75, 0"); A("s_cbranch_scc1 L_S1")
        for i in range(3): A(f"ds_read_b128 v[{XR+4*i}:{XR+3+4*i}], v4 offset:{L_XT + 48 + 16*i}")
        A("s_waitcnt lgkmcnt(0)")
        A("L_S1:")
        save = (list(vm), nxt[0])
        gphase(24, T3, [spst] * ahead + [spst + 4, spst + 6][:win - 2], [8 + tokgap, tokgap])
        A("s_branch L_S3")
        vm[:] = save[0]; nxt[0] = save[1]
    A("L_S2:")
    if g4:
        A("s_cmp_eq_u32 s75, 0"); A("s_cbranch_scc1 L_S2b")
        for x in center(60): A(x)
        scale_store(60)
        A("L_S2b:")
    gphase(NG, T2, [], [8 * k + tokgap for k in range(ahead + win - 1, -1, -1)])
    A("L_S3:")
    A("s_nop 7")
    gemv_epilogue(ACC, True)
    A("s_mov_b32 exec_lo, 0x00ff00ff"); A("s_mov_b32 exec_hi, 0x00ff00ff")
    A(f"buffer_store_dwordx4 v[{ACC}:{ACC+3}], v3, s[28:31], s69 offen sc1")
    A("s_mov_b64 exec, 0xff")
    A("buffer_store_dword v1, v56, s[28:31], s73 offen sc1")
    if lafter: token(lafter)
    stamp(4)
    A("s_branch L_fin")

    A("L_C:")
    if touch:
        A("s_mov_b64 exec, 0")
        for k in range(1, 7): A(f"s_cmp_eq_u32 s3, {k}"); A(f"s_cbranch_scc1 TS_{k-1}")
        A("s_branch TS_6")
        A("L_TSret:")
        A("s_mov_b64 exec, -1")
    A("s_setprio 1")
    if not vearly: vcode()
    build_sel()
    A("v_mov_b32 v130, 1")
    A("s_waitcnt lgkmcnt(0)")
    A("s_lshl_b32 s22, s3, 1"); A("s_sub_u32 s22, s22, 1")
    if pre: A(f"s_cmp_eq_u32 s3, {nst + 1}"); A(f"s_cselect_b32 s19, {pre}, 0"); A("s_sub_u32 s22, s22, s19")
    A("s_lshl_b32 s23, s42, 7"); A("s_lshl_b32 s24, s37, 10"); A("s_add_u32 s24, s24, s23")
    A("s_lshl_b32 s64, s37, 3"); A("s_add_u32 s64, s64, s41"); A("s_mul_i32 s65, s3, 24"); A("s_add_u32 s64, s64, s65"); A("s_sub_u32 s64, s64, 24")
    stamp0()
    A("s_mov_b32 s28, s26"); A("s_mov_b32 s29, s27")
    if vtlb:
        A("s_cmp_eq_u32 s3, 6"); A("s_cbranch_scc0 L_VT")
        A(f"v_lshlrev_b32 v4, {vtlb}, v0"); A("s_lshl_b32 s65, s2, 7"); A("v_add_u32 v4, s65, v4")
        A(f"s_mov_b64 exec, {hex((1 << (7340032 >> vtlb)) - 1)}")
        for p in (16, 18, 12, 20): A(f"global_load_dword v64, v4, s[{p}:{p+1}] nt")
        A("s_mov_b64 exec, -1")
        A("L_VT:")
    if fwarm:
        A("s_cmp_ge_u32 s64, 97"); A("s_cbranch_scc1 L_CW")
        A("s_lshl_b32 s65, s64, 10"); A("s_add_u32 s65, s65, s101"); A("v_lshlrev_b32 v4, 4, v0")
        if wfrom: A(f"s_cmp_lt_u32 s64, {wfrom}"); A("s_cbranch_scc1 L_CW")
        if wst:
            A("v_mov_b64 v[16:17], 0"); A("v_mov_b64 v[18:19], 0"); A("buffer_store_dwordx4 v[16:19], v4, s[28:31], s65 offen")
        else: A("buffer_load_dwordx4 v[64:67], v4, s[28:31], s65 offen")
        A("L_CW:")
    A("s_waitcnt vmcnt(0)")
    def pwait(sleep, lenient=0):
        l = lab("W")
        A(f"{l}:")
        A(f"ds_read_b32 v4, v7 offset:{F_C}" if lenient else f"ds_read_b64 v[4:5], v7 offset:{F_C}")
        if sleep: A(f"s_sleep {sleep}")
        budget()
        A(f"s_waitcnt lgkmcnt({lenient})")
        A("v_cmp_le_u32 vcc, s22, v4")
        A(f"s_cbranch_vccz {l}")
    def padd():
        A("s_mov_b64 exec, 1"); A(f"ds_add_u32 v7, v130 offset:{F_C}"); A("s_mov_b64 exec, -1")
    if ctouch:
        A("s_mov_b64 exec, 0"); A("s_branch TC_0"); A("L_TCret:"); A("s_mov_b64 exec, -1")
    pwait(csleep)
    A("L_TC0:")
    A("v_readfirstlane_b32 s36, v5"); tags(); flagval()
    A(f"s_cmp_le_u32 s3, {nst}"); A("s_cbranch_scc1 L_C0")
    A("v_cmp_le_u32 vcc, 64, v4"); A("s_cbranch_vccnz L_fin")
    if nst >= 5: A("s_branch L_fin")
    A("L_Cg:")
    A("s_mov_b32 s64, 1")
    A(f"s_atomic_add s64, s[26:27], s24 offset:{W_CT} glc")
    budget()
    A("s_waitcnt lgkmcnt(0)")
    A("s_xor_b32 s65, s64, s70"); A("s_lshr_b32 s65, s65, 8"); A("s_cbranch_scc1 L_Cg")
    A("s_and_b32 s64, s64, 0xff"); A("s_mul_i32 s64, s64, 3"); A("s_add_u32 s64, s64, s37"); A(f"s_add_u32 s64, s64, {24*nst}")
    if na:
        A(f"s_lshr_b32 s65, {nax}, s42"); A("s_and_b32 s65, s65, 1"); A(f"s_cselect_b32 s65, {8*na}, 0"); A("s_sub_u32 s65, 120, s65")
        A("s_cmp_lt_u32 s64, s65"); A("s_cbranch_scc1 L_C0")
    else:
        A("s_cmp_lt_u32 s64, 120"); A("s_cbranch_scc1 L_C0")
    A("v_mov_b32 v130, 64"); padd()
    A("s_branch L_fin")
    A("L_C0:")
    A("s_mov_b32 s16, s64")
    if urot: A(f"s_add_u32 s64, s64, {urot}"); A("s_cmp_ge_u32 s64, 120"); A("s_cselect_b32 s65, 120, 0"); A("s_sub_u32 s64, s64, s65")
    comm = not nocomm and not nox
    if stamps: A("s_add_u32 s0, s64, 1"); A(f"v_writelane_b32 v{VST}, s0, 14")
    A("s_lshl_b32 s9, s64, 7"); A("s_add_u32 s9, s9, s101"); A(f"s_add_u32 s17, s9, {GOFF}")
    if f4: A("s_lshl_b32 s9, s64, 4"); A("s_add_u32 s9, s9, s101")
    A("s_lshl_b32 s14, s42, 8")
    A("s_mov_b32 s7, 0x20000")
    A("s_cmp_lt_u32 s64, 64"); A("s_cbranch_scc0 L_CD")
    A("s_and_b32 s67, s64, 48"); A("s_add_u32 s67, s67, s64"); A("s_lshl_b32 s67, s67, 11"); A(f"s_add_u32 s56, s67, {W_XO}")
    A("s_add_u32 s25, s56, s23"); A("s_add_u32 s25, s25, 256"); A(f"s_add_u32 s24, s25, {16*2048}")
    A("s_add_u32 s57, s56, 128"); A(f"s_add_u32 s58, s56, {16*2048}"); A("s_add_u32 s59, s58, 128")
    A("s_mov_b32 s4, s12"); A("s_mov_b32 s5, s13"); A("s_mov_b32 s6, 8388608")
    A("s_mov_b32 s11, 13"); A(f"s_mov_b32 s12, {30 << 11}"); A("s_mov_b32 s60, -1"); A("s_mov_b32 s61, 1")
    for k in range(8): A(f"s_mov_b32 s{72+k}, s{32+(k&3)}")
    A("s_mov_b32 s80, 0xff"); A("s_mov_b32 s81, 0xff"); A("s_mov_b64 s[82:83], s[80:81]"); A("s_mov_b64 s[84:85], s[80:81]"); A("s_mov_b64 s[86:87], s[80:81]")
    A("v_lshlrev_b32 v131, 4, v2")
    A("s_branch L_CE")
    A("L_CD:")
    A("s_sub_u32 s64, s64, 64")
    if gw: A("s_lshr_b32 s25, s64, 1"); A("s_lshl_b32 s25, s25, 10")
    else: A("s_lshl_b32 s25, s64, 10")
    A("s_add_u32 s25, s25, s23"); A(f"s_add_u32 s25, s25, {W_FG}"); A("s_add_u32 s24, s25, 16")
    A("s_lshl_b32 s56, s64, 12"); A(f"s_add_u32 s56, s56, {W_GP}"); A("s_add_u32 s57, s56, 2048"); A("s_add_u32 s58, s56, 1024"); A("s_add_u32 s59, s56, 3072")
    A("s_mov_b32 s4, s20"); A("s_mov_b32 s5, s21"); A("s_mov_b32 s6, 7340032")
    A("s_mov_b32 s11, 14"); A(f"s_mov_b32 s12, {2 << 11}"); A("s_mov_b32 s60, 0xffff")
    A("s_and_b32 s61, s64, 7"); A("s_cmp_eq_u32 s61, 3"); A("s_cselect_b32 s61, -1, 0"); A("s_cmp_eq_u32 s64, 31"); A("s_cselect_b32 s61, -1, s61")
    if gw: A("s_mov_b32 s61, -1")
    for k in range(0, 8, 2): A(f"s_mov_b64 s[{72+k}:{73+k}], s[70:71]")
    A("s_mov_b64 s[80:81], -1"); A("s_mov_b32 s82, -1"); A("s_mov_b32 s83, 0"); A("s_mov_b32 s84, s61"); A("s_mov_b32 s85, s61"); A("s_mov_b32 s86, s61"); A("s_mov_b32 s87, 0")
    if gw: A("s_mov_b32 s61, 0")
    if g4: A("s_bfe_u32 s83, s64, 0x20001"); A("s_cmp_eq_u32 s83, 1"); A("s_cselect_b32 s83, -1, 0"); A("s_cselect_b32 s60, -1, s60"); A("s_mov_b32 s87, s83")
    A("v_lshlrev_b32 v131, 4, v0")
    A("L_CE:")
    def floads():
        A("s_load_dwordx4 s[88:91], s[26:27], s25 glc"); A("s_load_dwordx4 s[92:95], s[26:27], s24 glc")
    def fcheck(wait=True):
        if wait: A("s_waitcnt lgkmcnt(0)")
        for k in range(0, 8, 2): A(f"s_xor_b64 s[{48+k}:{49+k}], s[{88+k}:{89+k}], s[{72+k}:{73+k}]")
        for k in range(0, 8, 2): A(f"s_and_b64 s[{48+k}:{49+k}], s[{48+k}:{49+k}], s[{80+k}:{81+k}]")
        A("s_or_b64 s[48:49], s[48:49], s[50:51]"); A("s_or_b64 s[52:53], s[52:53], s[54:55]"); A("s_or_b64 s[48:49], s[48:49], s[52:53]")
    def xloads():
        lb = lab("X")
        A("s_mov_b32 exec_hi, s60")
        A("buffer_load_dwordx4 v[16:19], v131, s[28:31], s56 offen sc1"); A("buffer_load_dwordx4 v[20:23], v131, s[28:31], s57 offen sc1")
        A("s_cmp_eq_u32 s61, 0"); A(f"s_cbranch_scc1 {lb}")
        A("buffer_load_dwordx4 v[24:27], v131, s[28:31], s58 offen sc1"); A("buffer_load_dwordx4 v[28:31], v131, s[28:31], s59 offen sc1")
        A(f"{lb}:")
        A("s_mov_b32 exec_hi, -1")
    if comm:
        for k in range(0, 8, 2): A(f"s_not_b64 s[{88+k}:{89+k}], s[{72+k}:{73+k}]")
        floads()
    A("s_lshl_b32 s13, s64, 17"); A("s_add_u32 s13, s13, s14")
    A("v_lshlrev_b32 v1, s11, v2"); A("v_add_u32 v1, v1, v3")
    A(f"s_add_u32 s22, s22, {ahead}")
    if pre: A("s_add_u32 s22, s22, s19")
    A("v_lshrrev_b32 v5, 4, v0"); A("v_lshl_add_u32 v137, v5, 14, v3")
    for k in range(0, 16, 2): A(f"v_mov_b64 v[{16+k}:{17+k}], 0")
    A("v_mov_b32 v135, 1"); A("s_mov_b32 s18, 1")
    if comm and usp < 120:
        A(f"s_cmp_ge_u32 s16, {usp}"); A("s_cbranch_scc0 L_C7"); A("s_mov_b32 s18, 2"); xloads(); A("L_C7:")
    for n in range(16):
        if n == 0:
            if na: A("s_cmp_ge_u32 s2, 192"); A("s_cbranch_scc1 L_CL")
            pwait(wsleep, 4)
            if comm and early:
                A("s_cmp_eq_u32 s18, 2"); A("s_cbranch_scc1 L_C6")
                if refl:
                    fcheck(False); A("s_cbranch_scc0 L_C6a"); floads(); A("s_branch L_C6")
                    A("L_C6a:"); A("s_mov_b32 s18, 2"); xloads(); A("L_C6:")
                else:
                    fcheck(False); A("s_cbranch_scc1 L_C6"); A("s_mov_b32 s18, 2"); xloads(); A("L_C6:")
        if n == 8:
            A("s_add_u32 s22, s22, 1")
            pwait(wsleep, 8 if refl else 4)
            if comm:
                A("s_cmp_eq_u32 s18, 2"); A("s_cbranch_scc1 L_C4")
                fcheck(not refl); A("s_cbranch_scc1 L_C4"); A("s_mov_b32 s18, 0"); xloads(); A("L_C4:")
        A(f"buffer_load_dwordx4 v[{64+4*n}:{67+4*n}], v1, s[4:7], s13 offen offset:{((n >> 1) & 1) * 2048 + (n & 1) * 128} {NT}")
        if n == 7: A("s_add_u32 s13, s13, s12")
        elif n & 3 == 3 and n < 15: A("s_add_u32 s13, s13, 4096")
    if na: A("L_CL:")
    if ramp: A(f"s_cmp_eq_u32 s3, {ramp}"); A("s_cbranch_scc0 L_RP"); padd(); A("L_RP:")
    stamp(2)
    A("s_lshl_b32 s14, s3, 7"); A("v_lshlrev_b32 v133, 1, v5"); A("v_add3_u32 v133, v133, v3, s14"); A("v_and_b32 v5, 8, v0"); A("v_add_u32 v133, v133, v5")
    A("v_lshl_add_u32 v134, v2, 4, s14")
    if f4: A("v_lshrrev_b32 v5, 4, v0"); A("v_lshlrev_b32 v136, 7, v3"); A("v_lshl_add_u32 v136, v5, 14, v136")
    if comm:
        A("s_cmp_eq_u32 s18, 1"); A("s_cbranch_scc1 L_V4")
        if usp < 120 or refl: fcheck(); A("s_cbranch_scc1 L_V5")
        A("s_waitcnt lgkmcnt(0)")
        A("s_branch L_V7")
        A("L_V4:")
        A("v_mov_b32 v135, 0")
        if refl:
            fcheck(); A("s_cbranch_scc0 L_V4a")
        floads()
        if mid:
            fcheck(); A("s_cbranch_scc1 L_V4b")
            if refl: A("L_V4a:")
            xloads()
            stamp(8)
            A(f"s_waitcnt vmcnt({10 + tokgap})")
            padd()
            A(f"s_waitcnt vmcnt({2 + tokgap})")
            padd()
            A("s_branch L_V6")
            A("L_V4b:")
            floads()
        A(f"s_waitcnt vmcnt({8 + tokgap})")
        padd()
        fcheck(); A("s_cbranch_scc1 L_V5")
        xloads()
        stamp(8)
        A(f"s_waitcnt vmcnt({2 + tokgap})")
        padd()
        A("s_branch L_V6")
        A("L_V5:")
        floads()
        budget()
        A(f"s_waitcnt vmcnt({tokgap})")
        padd()
        A("s_branch L_V2")
        A("L_V1:")
        if pp:
            floads()
            A(f"s_sleep {pp}")
            budget()
            A("L_V2:")
            fcheck(False); A("s_cbranch_scc1 L_V1")
            xloads()
            A("L_V2b:")
            fcheck(); A("s_cbranch_scc0 L_V2c")
            floads(); budget(); A("s_branch L_V2b")
            A("L_V2c:")
        else:
            if xsleep: A(f"s_sleep {xsleep}")
            floads()
            budget()
            A("L_V2:")
            fcheck(); A("s_cbranch_scc1 L_V1")
            xloads()
        stamp(5)
        A("L_V6:")
        A("v_mov_b32 v130, 0"); A("s_mov_b32 s18, 1")
        A("L_V7:")
        A("s_cmp_eq_u32 s11, 14"); A("s_cbranch_scc1 L_V8")
        A("s_and_b32 s20, s88, 0xffffff00"); A("s_and_b32 s21, s92, 0xffffff00")
        A("v_mov_b32 v32, s20"); A("v_max_f32 v34, s21, v32")
        A("v_sub_f32 v32, v32, v34"); A("v_sub_f32 v33, s21, v34")
        A("v_mul_f32 v32, 0x3fb8aa3b, v32"); A("v_mul_f32 v33, 0x3fb8aa3b, v33")
        A("v_exp_f32 v32, v32"); A("v_exp_f32 v33, v33")
        A("s_xor_b32 s20, s89, s33"); A("s_xor_b32 s21, s93, s33"); A("v_mul_f32 v34, s20, v32"); A("v_fmac_f32 v34, s21, v33"); A("v_rcp_f32 v34, v34")
        A("v_mul_f32 v32, v32, v34"); A("v_mul_f32 v33, v33, v34")
        A("L_V8:")
        A("s_mov_b32 exec_hi, s60")
        A("s_waitcnt vmcnt(16)")
        A("s_cmp_eq_u32 s18, 2"); A("s_cbranch_scc1 L_V9")
        A("s_waitcnt vmcnt(8)")
        A("s_cmp_eq_u32 s18, 0"); A("s_cbranch_scc0 L_V10")
        A("s_mov_b64 exec, 1"); A(f"ds_add_u32 v7, v135 offset:{F_C}"); A("v_mov_b32 v135, 0"); A("s_mov_b32 exec_lo, -1"); A("s_mov_b32 exec_hi, s60")
        A("s_branch L_V9")
        A("L_V10:")
        A("s_waitcnt vmcnt(0)")
        A("L_V9:")
        for k in range(8): A(f"v_xor_b32 v{16+k}, s{32+(k&3)}, v{16+k}")
        A("v_or3_b32 v5, v16, v17, v18"); A("v_or3_b32 v4, v19, v20, v21"); A("v_or3_b32 v5, v5, v22, v23")
        A("s_cmp_eq_u32 s61, 0"); A("s_cbranch_scc1 L_V11")
        for k in range(8): A(f"v_xor_b32 v{24+k}, s{32+(k&3)}, v{24+k}")
        A("v_or3_b32 v5, v5, v24, v25"); A("v_or3_b32 v4, v4, v26, v27"); A("v_or3_b32 v5, v5, v28, v29"); A("v_or3_b32 v4, v4, v30, v31")
        A("L_V11:")
        A("v_bitop3_b32 v5, v5, v4, v6 bitop3:0xa8"); A("v_cmp_ne_u32 vcc, 0, v5")
        A("s_mov_b32 exec_hi, -1")
        A("s_cbranch_vccnz L_V5")
        stamp(6)
        if cprio != 1: A(f"s_setprio {cprio}")
        A("s_cmp_eq_u32 s11, 14"); A("s_cbranch_scc1 L_C3")
        for k in range(4): A(f"v_pk_mul_f32 v[{16+2*k}:{17+2*k}], v[{16+2*k}:{17+2*k}], v[32:33] op_sel_hi:[1,0]")
        if mrg == 0:
            for k in range(4): A(f"v_pk_fma_f32 v[{16+2*k}:{17+2*k}], v[{24+2*k}:{25+2*k}], v[32:33], v[{16+2*k}:{17+2*k}] op_sel:[0,1,0]")
        elif mrg == 1:
            for k in range(8): A(f"v_fmac_f32 v{16+k}, v{24+k}, v33")
        else:
            A("v_mov_b32 v34, v33")
            for k in range(4): A(f"v_pk_fma_f32 v[{16+2*k}:{17+2*k}], v[{24+2*k}:{25+2*k}], v[34:35], v[{16+2*k}:{17+2*k}] op_sel_hi:[1,0,1]")
        for k in range(4): A(f"v_cvt_pk_bf16_f32 v{16+k}, v{16+2*k}, v{17+2*k}")
        A("s_branch L_C5")
        A("L_C3:")
        A("s_cmp_eq_u32 s61, 0"); A("s_cbranch_scc1 L_C3b")
        for j in range(0, 8, 2): A(f"v_pk_add_f32 v[{16+j}:{17+j}], v[{16+j}:{17+j}], v[{24+j}:{25+j}]")
        A("L_C3b:")
        for r in (16, 20): A(f"v_permlane32_swap_b32 v{r}, v{r+2}"); A(f"v_permlane32_swap_b32 v{r+1}, v{r+3}")
        for r in (16, 20): A(f"v_pk_add_f32 v[{r}:{r+1}], v[{r}:{r+1}], v[{r+2}:{r+3}]")
        for r in (16, 20): A(f"v_permlane16_swap_b32 v{r}, v{r+1}")
        for r in (16, 20): A(f"v_add_f32 v{r}, v{r}, v{r+1}")
        A("v_cvt_pk_bf16_f32 v20, v16, v20"); A("v_lshlrev_b32 v16, 16, v20"); A("v_and_b32 v20, 0xffff0000, v20")
        A("v_mul_f32 v16, 0xbfb8aa3b, v16"); A("v_exp_f32 v16, v16"); A("v_add_f32 v16, 1.0, v16"); A("v_rcp_f32 v16, v16")
        bf16r("v16")
        A("v_mul_f32 v16, v16, v20")
        A("v_cvt_pk_bf16_f32 v16, v16, v16")
        A(f"ds_write_b16 v133, v16 offset:{L_H}")
        A(f"ds_read_b128 v[16:19], v134 offset:{L_H}")
        A("s_waitcnt lgkmcnt(0)")
        A("L_C5:")
    stamp(3)
    sel(24, 16, 0)
    for n in range(16):
        t = n >> 1; acc = 56 + 4 * (n & 1)
        if t < 7:
            for d in (0, 1): A(f"v_perm_b32 v{24 + 4*(t+1) + 2*(n&1) + d}, v{16 + ((t+1) >> 1)}, v{16 + ((t+1) >> 1)}, v{8 + 4*((t+1)&1) + 2*(n&1) + d}")
        A(f"s_waitcnt vmcnt({15-n})")
        if lad == 1 and 15 - n in (8 + tokgap, tokgap): A("s_nop 15")
        if 15 - n == 8 + tokgap: A("s_mov_b64 exec, 1"); A(f"ds_add_u32 v7, v135 offset:{F_C}"); A("s_mov_b64 exec, -1")
        if 15 - n == tokgap: padd()
        if lad == 2 and 15 - n in (8 + tokgap, tokgap): A("s_nop 7")
        if lad == 3: A("s_nop 7")
        A(f"v_mfma_f32_16x16x32_bf16 v[{acc}:{acc+3}], v[{24+4*t}:{27+4*t}], v[{64+4*n}:{67+4*n}], {'0' if t == 0 else f'v[{acc}:{acc+3}]'}")
    if lad == 4: A("s_nop 15")
    gemv_epilogue(56)
    A("s_mov_b32 exec_lo, 0x00ff00ff"); A("s_mov_b32 exec_hi, 0x00ff00ff")
    A(f"buffer_store_dwordx4 v[56:59], {'v136' if f4 else 'v137'}, s[28:31], s9 offen {lst}")
    stamp(4)
    if endbar:
        if na: A("s_cmp_ge_u32 s2, 192"); A("s_cbranch_scc1 L_CZ")
        A("s_barrier")
        if na: A("L_CZ:")
    if not nog: A("buffer_store_dwordx4 v[56:59], v137, s[28:31], s17 offen sc1")
    A("s_branch L_fin")

    if na:
        A("L_AC:")
        A("s_mov_b32 s64, s96")
        A("s_lshl_b32 s23, s42, 7")
        A("v_lshrrev_b32 v2, 3, v0"); A("v_and_b32 v3, 7, v0"); A("v_lshlrev_b32 v3, 4, v3"); A("v_mov_b32 v130, 0")
        build_sel()
        A("s_waitcnt vmcnt(0)")
        for k in range(0, 64, 2): A(f"v_mov_b64 v[{64+k}:{65+k}], v[{140+k}:{141+k}]")
        A("s_branch L_C0")
    A("L_Cend:")
    for x in Afirst: A(x)
    A("L_A2:")
    stamp0()
    A("s_load_dword s36, s[26:27], 0"); A("s_mov_b32 s28, s26"); A("s_mov_b32 s29, s27")
    A("s_lshl_b32 s53, s40, 3"); A("s_add_u32 s53, s53, s3")
    A("s_lshl_b32 s55, s53, 4"); A(f"s_and_b32 s56, s43, {qrep-1}"); A("s_add_u32 s55, s55, s56"); A("s_lshl_b32 s55, s55, 7"); A(f"s_add_u32 s55, s55, {W_FQ}")
    A("s_load_dword s72, s[26:27], s55 glc")
    A("v_lshlrev_b32 v134, 4, v0"); A("v_and_b32 v10, 7, v8"); A("v_lshlrev_b32 v135, 4, v10")
    A("s_lshl_b32 s56, s41, 12"); A("s_lshl_b32 s57, s3, 10"); A("s_add_u32 s56, s56, s57"); A("s_add_u32 s56, s56, s101"); A(f"s_add_u32 s56, s56, {O_OP}")
    A("s_lshl_b32 s57, s41, 7"); A("s_add_u32 s57, s57, s101"); A(f"s_add_u32 s57, s57, {O_ML}")
    A("s_lshl_b32 s58, s38, 12"); A("s_lshl_b32 s59, s3, 10"); A("s_add_u32 s58, s58, s59"); A(f"s_add_u32 s58, s58, {W_XO}")
    A("s_cmp_eq_u32 s3, 1"); A("s_cbranch_scc0 L_A3")
    A("s_lshl_b32 s58, s39, 10"); A(f"s_add_u32 s58, s58, {W_FG - 256}")
    A("L_A3:")
    A("s_cmp_ge_u32 s3, 3"); A("s_cbranch_scc1 L_A3b")
    for k in range(8): A(f"s_load_dword s{88+k}, s[26:27], s58 offset:{256 + 128*k} glc")
    A("L_A3b:")
    def prewarm():
        A("s_cmp_ge_u32 s3, 3"); A("s_cbranch_scc1 L_A4")
        A("buffer_load_dwordx4 v[88:91], v134, s[28:31], s56 offen sc1")
        A("buffer_load_dwordx4 v[88:91], v134, s[28:31], s56 offen offset:1024 sc1")
        A("buffer_load_dwordx4 v[88:91], v135, s[28:31], s57 offen sc1")
        A("s_cmp_eq_u32 s3, 1"); A("s_cbranch_scc0 L_A4")
        A("buffer_load_dwordx4 v[88:91], v134, s[28:31], s56 offen offset:2048 sc1")
        A("buffer_load_dwordx4 v[88:91], v134, s[28:31], s56 offen offset:3072 sc1")
        A("L_A4:")
    if not latewarm and not fwarm: prewarm()
    A("v_lshlrev_b32 v5, 1, v10"); A("v_xor_b32 v5, v5, v9"); A("v_lshlrev_b32 v5, 4, v5")
    A("v_lshl_add_u32 v2, v8, 8, v5"); A("v_add_u32 v2, s66, v2")
    A("v_lshrrev_b32 v5, 2, v8"); A("v_lshl_add_u32 v5, v9, 2, v5")
    A("v_and_b32 v11, 7, v5"); A("v_lshlrev_b32 v11, 5, v11"); A("v_and_b32 v12, 3, v8"); A("v_lshl_add_u32 v11, v12, 3, v11")
    A("v_lshl_add_u32 v11, v5, 8, v11"); A(f"s_add_u32 s67, s66, {L_V}"); A("v_add_u32 v11, s67, v11")
    for n in range(TA + adelay, TA + adelay + 2): aload(n)
    A("s_lshl_b32 s67, s41, 3"); A("s_add_u32 s67, s67, s3"); A("s_cmp_eq_u32 s67, 3"); A("s_cbranch_scc0 L_A5")
    A("s_waitcnt lgkmcnt(0)")
    tags(); flagval()
    A("s_and_b32 s67, s70, 0xffffff00"); A("v_mov_b32 v5, s67"); A("s_lshl_b32 s67, s42, 7")
    A("v_lshlrev_b32 v12, 10, v0")
    A("s_mov_b64 exec, 7"); A(f"buffer_store_dword v5, v12, s[28:31], s67 offen offset:{W_CT} sc1"); A("s_mov_b64 exec, -1")
    A("L_A5:")
    A("v_lshrrev_b32 v13, 5, v0"); A("v_and_b32 v14, 31, v0"); A("v_lshlrev_b32 v14, 4, v14"); A("v_lshl_add_u32 v1, v13, 14, v14")
    A("s_lshl_b32 s52, s53, 9"); A(f"s_add_u32 s52, s52, {W_QP}"); A("s_add_u32 s54, s52, 0x8000"); A("s_add_u32 s53, s52, 0x10000")
    A("v_and_b32 v12, 1, v9"); A("v_lshlrev_b32 v12, 7, v12"); A("v_lshl_add_u32 v12, v10, 4, v12")
    A("v_lshrrev_b32 v133, 3, v8"); A("v_lshl_add_u32 v12, v133, 3, v12"); A("v_lshl_add_u32 v12, v13, 2, v12")
    A(f"s_mul_i32 s67, s3, {QS}"); A(f"s_add_u32 s67, s67, {L_Q}"); A("v_add_u32 v12, s67, v12")
    A(f"v_mul_u32_u24 v15, {QS}, v10"); A("v_lshl_add_u32 v15, v9, 4, v15"); A(f"v_add_u32 v15, {L_Q}, v15")
    A(f"v_mul_u32_u24 v128, {OWH}, v10"); A("v_lshl_add_u32 v128, v9, 4, v128"); A("v_lshl_add_u32 v128, v133, 6, v128"); A("v_add_u32 v128, s66, v128")
    A("s_lshl_b32 s67, s3, 3"); A(f"s_add_u32 s67, s67, {L_ML}"); A("v_lshl_add_u32 v129, v10, 6, s67")
    A(f"s_mul_i32 s67, s3, {OWH}"); A("v_lshl_add_u32 v130, v13, 15, v14"); A("v_add_u32 v130, s67, v130")
    A("s_lshl_b32 s67, s3, 6"); A(f"s_add_u32 s67, s67, {L_ML}"); A("v_lshl_add_u32 v131, v13, 5, s67")
    A("s_lshl_b32 s67, s3, 12"); A("s_lshl_b32 s69, s41, 8"); A("s_add_u32 s67, s67, s69"); A("s_add_u32 s67, s67, s101"); A(f"s_add_u32 s67, s67, {O_OP}")
    A("v_lshlrev_b32 v5, 4, v8"); A("v_lshl_add_u32 v132, v9, 11, v5"); A("v_add_u32 v132, s67, v132")
    A("s_lshl_b32 s67, s3, 7"); A("s_lshl_b32 s69, s41, 4"); A("s_add_u32 s67, s67, s69"); A("s_add_u32 s67, s67, s101"); A(f"s_add_u32 s67, s67, {O_ML}")
    A("s_mov_b32 exec_lo, 0"); A("v_mov_b32 v132, s67"); A("s_mov_b32 exec_lo, -1")
    A("v_mov_b32 v136, v134"); A("s_mov_b64 exec, 0xff0000"); A("v_lshlrev_b32 v136, 7, v8"); A("v_add_u32 v136, 256, v136"); A("s_mov_b64 exec, -1")
    if at:
        for u in range(1, 8): A(f"v_xor_b32 v{139+u}, {u*32}, v11")
    for k in range(8): A(f"v_mov_b32 v{112+k}, 0")
    A("v_mov_b32 v122, 0"); A("v_mov_b32 v123, 0")
    if na:
        A("s_sub_u32 s96, s3, 4"); A(f"s_cmp_lt_u32 s96, {na}"); A(f"s_cselect_b32 s97, {nax}, 0"); A("s_lshr_b32 s97, s97, s42")
        A("s_lshl_b32 s96, s96, 3"); A("s_add_u32 s96, s96, s41"); A(f"s_add_u32 s96, s96, {120 - 8*na}")
        A("s_and_b32 s97, s97, 1"); A("s_cselect_b32 s96, s96, 0")
        A("s_sub_u32 s97, s96, 64"); A("s_lshl_b32 s97, s97, 17"); A("s_lshl_b32 s67, s42, 8"); A("s_add_u32 s97, s97, s67")
        A("v_lshrrev_b32 v138, 3, v0"); A("v_lshlrev_b32 v138, 14, v138"); A("v_add_u32 v138, v138, v135")
        srd(12, 20, 7340032)
    RW = 2 if c3 else 1
    if dp1 or dp2:
        if c3: A("v_lshrrev_b32 v138, 3, v0"); A("v_lshl_add_u32 v138, v138, 11, v135"); A("v_add_u32 v138, 128, v138")
        else: A("v_lshlrev_b32 v138, 4, v8"); A("v_lshl_add_u32 v138, v9, 11, v138")
        srd(12, 20, 7340032)
        if c3: A("s_and_b32 s67, s42, 3"); A("s_cmp_eq_u32 s67, 1"); A("s_cselect_b32 s14, s14, 0")
        A("s_lshl_b32 s96, s42, 8")
        A("s_lshl_b32 s97, s41, 3"); A("s_add_u32 s97, s97, s3"); A(f"s_lshl_b32 s97, s97, {12 + RW}"); A("s_add_u32 s97, s97, s96"); A(f"s_add_u32 s97, s97, {(3584 - RW*(128*dp2 + 256*dp1)) * 2048}")
        A("s_lshl_b32 s67, s41, 2"); A("s_add_u32 s67, s67, s3"); A(f"s_lshl_b32 s67, s67, {12 + RW}"); A("s_add_u32 s96, s96, s67"); A(f"s_add_u32 s96, s96, {(3584 - RW*(128*dp2 + 16)) * 2048}")
    A(f"s_mov_b32 s59, {GOFF}"); A("s_mov_b32 s60, 0x3db504f3"); A("s_mov_b32 s62, 0x3fb8aa3b")
    for n in range(TA + adelay + 2, 16):
        aload(n)
        if prof and n in (7, 11): stamp(12 + (7, 11).index(n))
        if atouch and n == TA + 3:
            A("s_mov_b64 exec, 0")
            for k in range(7): A(f"s_cmp_eq_u32 s3, {k}"); A(f"s_cbranch_scc1 TA_{k}")
            A("s_branch TA_7")
            A("L_TAret:")
            A("s_mov_b64 exec, -1")
    A("s_waitcnt lgkmcnt(0)")
    if latewarm and not fwarm: prewarm()
    tags(); flagval()
    if at: A("v_mov_b64 v[84:85], 0"); A("v_mov_b64 v[86:87], 0")
    elif not qw: tagonly(84)
    stamp(1)
    def qloads():
        if qw:
            A("buffer_load_dwordx4 v[80:83], v1, s[28:31], s52 offen sc1"); A("buffer_load_dwordx4 v[84:87], v1, s[28:31], s54 offen sc1")
            A("buffer_load_dwordx4 v[88:91], v1, s[28:31], s53 offen sc1")
            return
        A("buffer_load_dwordx4 v[80:83], v1, s[28:31], s52 offen sc1")
        A("s_mov_b32 exec_hi, 0")
        A("buffer_load_dwordx4 v[84:87], v1, s[28:31], s54 offen sc1")
        A("s_mov_b32 exec_hi, -1")
    def kfrags():
        for t in range(4):
            if t: A(f"v_xor_b32 v5, {t*64}, v2")
            A(f"ds_read_b128 v[{16+4*t}:{19+4*t}], {'v5' if t else 'v2'}")
            A(f"ds_read_b128 v[{32+4*t}:{35+4*t}], {'v5' if t else 'v2'} offset:4096")
    assert TA <= 8
    kfrags()
    lq = lab("H"); l2 = lab("H")
    if not nocomm:
        if qpp:
            A("s_waitcnt lgkmcnt(0)")
            A("s_not_b64 s[88:89], s[70:71]")
            A(f"{lq}:")
            A("s_load_dwordx8 s[88:95], s[26:27], s55 glc")
            A(f"s_sleep {qpp}")
            budget()
            for k in range(0, 6, 2): A(f"s_xor_b64 s[{72+k}:{73+k}], s[{88+k}:{89+k}], s[70:71]")
            for k in range(2, 6, 2): A(f"s_or_b64 s[72:73], s[72:73], s[{72+k}:{73+k}]")
            A(f"s_cbranch_scc1 {lq}")
        else:
            A(f"s_branch {l2}")
            A(f"{lq}:")
            A(f"s_sleep {qsleep}")
            A(f"{l2}:")
            A("s_load_dwordx8 s[72:79], s[26:27], s55 glc")
            budget()
            A("s_waitcnt lgkmcnt(0)")
            for k in range(0, 6, 2): A(f"s_xor_b64 s[{72+k}:{73+k}], s[{72+k}:{73+k}], s[70:71]")
            for k in range(2, 6, 2): A(f"s_or_b64 s[72:73], s[72:73], s[{72+k}:{73+k}]")
            A(f"s_cbranch_scc1 {lq}")
        qloads()
    stamp(11)
    A("L_TA0:")
    if at:
        if at == 2:
            A("s_waitcnt vmcnt(2)")
            for u in range(8):
                a_ = f"v{139+u}" if u else "v11"
                A(f"ds_read_b64_tr_b16 v[{48+4*u}:{49+4*u}], {a_}"); A(f"ds_read_b64_tr_b16 v[{50+4*u}:{51+4*u}], {a_} offset:4096")
        A("s_mov_b32 exec_hi, 0")
        A("s_waitcnt vmcnt(0)")
        for k in range(4): A(f"v_xor_b32 v{84+k}, s{32+k}, v{84+k}")
        A("s_mov_b32 exec_hi, -1")
        for k in range(4): A(f"v_xor_b32 v{80+k}, s{32+k}, v{80+k}")
        A("v_or3_b32 v5, v84, v85, v86"); A("v_or3_b32 v92, v87, v80, v81"); A("v_or3_b32 v5, v5, v82, v83")
        A("v_pk_add_f32 v[80:81], v[80:81], v[84:85]"); A("v_pk_add_f32 v[82:83], v[82:83], v[86:87]")
        A("v_bitop3_b32 v5, v5, v92, v6 bitop3:0xa8"); A("v_cmp_ne_u32 vcc, 0, v5")
        A(f"s_cbranch_vccnz {lq}")
        stamp(3)
    else:
        A(f"s_waitcnt vmcnt({0 if nocomm else (3 if qw else 2)})")
        stamp(2)
        if nocomm: A("s_branch L_fin")
        for u in range(8):
            if u: A(f"v_xor_b32 v5, {u*32}, v11")
            A(f"ds_read_b64_tr_b16 v[{48+4*u}:{49+4*u}], {'v5' if u else 'v11'}")
            A(f"ds_read_b64_tr_b16 v[{50+4*u}:{51+4*u}], {'v5' if u else 'v11'} offset:4096")
        A("s_waitcnt vmcnt(0)")
        if qw:
            for k in range(12): A(f"v_xor_b32 v{80+k}, s{32+(k&3)}, v{80+k}")
            A("v_or3_b32 v5, v80, v81, v82"); A("v_or3_b32 v92, v83, v84, v85"); A("v_or3_b32 v5, v5, v86, v87"); A("v_or3_b32 v92, v92, v88, v89"); A("v_or3_b32 v5, v5, v90, v91")
            A("v_bitop3_b32 v5, v5, v92, v6 bitop3:0xa8"); A("v_cmp_ne_u32 vcc, 0, v5")
            if not nocomm: A(f"s_cbranch_vccnz {lq}")
            stamp(3)
            for k in (84, 88): A(f"v_pk_add_f32 v[80:81], v[80:81], v[{k}:{k+1}]"); A(f"v_pk_add_f32 v[82:83], v[82:83], v[{k+2}:{k+3}]")
        else:
            tagcheck([80, 84], "v5")
            if not nocomm: A(f"s_cbranch_vccnz {lq}")
            stamp(3)
            untag([80, 84])
            A("v_pk_add_f32 v[80:81], v[80:81], v[84:85]"); A("v_pk_add_f32 v[82:83], v[82:83], v[86:87]")
    A("v_permlane32_swap_b32 v80, v82"); A("v_permlane32_swap_b32 v81, v83")
    A("v_pk_add_f32 v[80:81], v[80:81], v[82:83]")
    A("v_cvt_pk_bf16_f32 v80, v80, v81")
    A("ds_write_b32 v12, v80")
    A("s_waitcnt lgkmcnt(0)")
    A("s_barrier")
    if na:
        A("s_cmp_eq_u32 s96, 0"); A("s_cbranch_scc1 L_AL")
        for n in range(16):
            A(f"buffer_load_dwordx4 v[{140+4*n}:{143+4*n}], v138, s[12:15], s97 offen offset:{((n >> 1) & 1) * 2048 + (n & 1) * 128} {NT}")
            if n & 3 == 3 and n < 15: A("s_add_u32 s97, s97, 4096")
        A("L_AL:")
    if aprio: A("s_cmp_lt_u32 s3, 4"); A("s_cbranch_scc1 L_AP"); A("s_setprio 1"); A("L_AP:")
    if astamp: stamp(10)
    for t in range(4): A(f"ds_read_b128 v[{80+4*t}:{83+4*t}], v15 offset:{64*t}")
    for k in range(dp1):
        A("buffer_load_dwordx4 v[124:127], v138, s[12:15], s97 offen")
        if k < dp1 - 1: A(f"s_add_u32 s97, s97, {RW*256*2048}")
    vr = []
    if at == 1:
        for u in range(8):
            a_ = f"v{139+u}" if u else "v11"
            vr += [f"ds_read_b64_tr_b16 v[{48+4*u}:{49+4*u}], {a_}", f"ds_read_b64_tr_b16 v[{50+4*u}:{51+4*u}], {a_} offset:4096"]
    nv_ = 0
    for t in range(4):
        A(f"s_waitcnt lgkmcnt({3 - t + nv_})")
        A(f"v_mfma_f32_16x16x32_bf16 v[96:99], v[{16+4*t}:{19+4*t}], v[{80+4*t}:{83+4*t}], {'0' if t == 0 else 'v[96:99]'}")
        if vr: A(vr.pop(0)); nv_ += 1
        A(f"v_mfma_f32_16x16x32_bf16 v[100:103], v[{32+4*t}:{35+4*t}], v[{80+4*t}:{83+4*t}], {'0' if t == 0 else 'v[100:103]'}")
        if vr: A(vr.pop(0)); nv_ += 1
    for x in vr: A(x)
    for j in range(4): A(f"v_mov_b32_dpp v{96+j}, v{100+j} quad_perm:[0,1,2,3] row_mask:0xf bank_mask:0xc")
    def round4():
        for k in range(2): A(f"v_cvt_pk_bf16_f32 v{104+k}, v{96+2*k}, v{97+2*k}")
        for k in range(2):
            A(f"v_lshlrev_b32 v{96+2*k}, 16, v{104+k}"); A(f"v_and_b32 v{97+2*k}, 0xffff0000, v{104+k}")
    round4()
    for k in range(2): A(f"v_pk_mul_f32 v[{96+2*k}:{97+2*k}], v[{96+2*k}:{97+2*k}], s[60:61] op_sel_hi:[1,0]")
    round4()
    A("v_max3_f32 v108, v96, v97, v98"); A("v_max_f32 v108, v108, v99")
    dpp("v_max_f32", "v108", "v108", "v108", 8)
    xrows("v_max_f32", "v108", "v5")
    for k in range(2): A(f"v_pk_add_f32 v[{96+2*k}:{97+2*k}], v[{96+2*k}:{97+2*k}], v[108:109] op_sel_hi:[1,0] neg_lo:[0,1] neg_hi:[0,1]")
    for k in range(2): A(f"v_pk_mul_f32 v[{96+2*k}:{97+2*k}], v[{96+2*k}:{97+2*k}], s[62:63] op_sel_hi:[1,0]")
    for j in range(4): A(f"v_exp_f32 v{96+j}, v{96+j}")
    for k in range(2): A(f"v_cvt_pk_bf16_f32 v{104+k}, v{96+2*k}, v{97+2*k}")
    if at:
        A("v_pk_add_f32 v[96:97], v[96:97], v[98:99]"); A("v_add_f32 v109, v96, v97")
        for k in range(2): A(f"v_mov_b32_dpp v{112+k}, v{104+k} quad_perm:[0,1,2,3] row_mask:0xf bank_mask:0x3")
        for k in range(2): A(f"v_mov_b32_dpp v{114+k}, v{104+k} row_ror:8 row_mask:0xf bank_mask:0x3")
        for k in range(2): A(f"v_mov_b32_dpp v{116+k}, v{104+k} row_ror:8 row_mask:0xf bank_mask:0xc")
        if at == 1: A("s_waitcnt lgkmcnt(0)")
        def lo(p): A(f"v_mfma_f32_16x16x32_bf16 v[{16+4*p}:{19+4*p}], v[{48+8*p}:{51+8*p}], v[112:115], 0")
        def hi(p): A(f"v_mfma_f32_16x16x32_bf16 v[{16+4*p}:{19+4*p}], v[{52+8*p}:{55+8*p}], v[116:119], v[{16+4*p}:{19+4*p}]")
        def wr(p): A(f"ds_write_b128 v128, v[{16+4*p}:{19+4*p}] offset:{128*p}")
        lo(0)
        for k in range(2): A(f"v_mov_b32_dpp v{118+k}, v{104+k} quad_perm:[0,1,2,3] row_mask:0xf bank_mask:0xc")
        lo(1)
        A("v_add_f32_dpp v109, v109, v109 row_ror:8 row_mask:0xf bank_mask:0xf"); A("v_mov_b32 v5, v109")
        hi(0); hi(1)
        A("v_permlane16_swap_b32 v109, v5"); A("v_add_f32 v109, v109, v5")
        lo(2); A("v_mov_b32 v5, v109"); hi(2); lo(3)
        A("v_permlane32_swap_b32 v109, v5"); A("v_add_f32 v109, v109, v5")
        wr(0); hi(3); wr(1)
        A("ds_write_b64 v129, v[108:109]")
        wr(2); wr(3)
    else:
        A("v_pk_add_f32 v[96:97], v[96:97], v[98:99]"); A("v_add_f32 v109, v96, v97")
        for k in range(2): A(f"v_mov_b32_dpp v{112+k}, v{104+k} quad_perm:[0,1,2,3] row_mask:0xf bank_mask:0x3")
        for k in range(2): A(f"v_mov_b32_dpp v{114+k}, v{104+k} row_ror:8 row_mask:0xf bank_mask:0x3")
        for k in range(2): A(f"v_mov_b32_dpp v{116+k}, v{104+k} row_ror:8 row_mask:0xf bank_mask:0xc")
        for k in range(2): A(f"v_mov_b32_dpp v{118+k}, v{104+k} quad_perm:[0,1,2,3] row_mask:0xf bank_mask:0xc")
        if astamp: stamp(12)
        fill = ["v_add_f32_dpp v109, v109, v109 row_ror:8 row_mask:0xf bank_mask:0xf", "v_mov_b32 v5, v109",
                "v_permlane16_swap_b32 v109, v5", "v_add_f32 v109, v109, v5", "v_mov_b32 v5, v109",
                "v_permlane32_swap_b32 v109, v5", "v_add_f32 v109, v109, v5", "ds_write_b64 v129, v[108:109]"]
        for p in range(4):
            A(f"v_mfma_f32_16x16x32_bf16 v[{16+4*p}:{19+4*p}], v[{48+8*p}:{51+8*p}], v[112:115], 0")
            A(fill.pop(0))
            A(f"v_mfma_f32_16x16x32_bf16 v[{16+4*p}:{19+4*p}], v[{52+8*p}:{55+8*p}], v[116:119], v[{16+4*p}:{19+4*p}]")
            A(fill.pop(0))
        for p in range(4):
            A(f"ds_write_b128 v128, v[{16+4*p}:{19+4*p}] offset:{128*p}")
    A("s_waitcnt lgkmcnt(0)")
    if astamp: stamp(13)
    A("s_barrier")
    if astamp: stamp(14)
    A("ds_read_b128 v[64:67], v131"); A("ds_read_b128 v[68:71], v131 offset:16")
    for k in range(4): A(f"ds_read_b128 v[{48+4*k}:{51+4*k}], v130 offset:{8192*k}")
    A("s_waitcnt lgkmcnt(4)")
    A("v_max_f32 v120, v64, v66"); A("v_max3_f32 v120, v120, v68, v70")
    A("v_mov_b32 v5, v120"); A("v_permlane32_swap_b32 v120, v5"); A("v_max_f32 v120, v120, v5")
    for k in range(4): A(f"v_sub_f32 v{64+2*k}, v{64+2*k}, v120")
    for k in range(4): A(f"v_mul_f32 v{64+2*k}, 0x3fb8aa3b, v{64+2*k}")
    for k in range(4): A(f"v_exp_f32 v{64+2*k}, v{64+2*k}")
    A("v_mul_f32 v120, 0.5, v120")
    A("v_mul_f32 v121, v65, v64")
    for k in range(1, 4): A(f"v_fmac_f32 v121, v{65+2*k}, v{64+2*k}")
    A("s_waitcnt lgkmcnt(0)")
    for j in (0, 2): A(f"v_pk_mul_f32 v[{48+j}:{49+j}], v[{48+j}:{49+j}], v[64:65] op_sel_hi:[1,0]")
    for k in range(1, 4):
        for j in (0, 2): A(f"v_pk_fma_f32 v[{48+j}:{49+j}], v[{48+4*k+j}:{49+4*k+j}], v[{64+2*k}:{65+2*k}], v[{48+j}:{49+j}] op_sel_hi:[1,0,1]")
    for j in range(4): A(f"v_permlane32_swap_b32 v{48+j}, v{120+j}")
    for j in (0, 2): A(f"v_pk_add_f32 v[{48+j}:{49+j}], v[{48+j}:{49+j}], v[{120+j}:{121+j}]")
    tagput(48)
    A("s_mov_b32 exec_hi, 1")
    A(f"buffer_store_dwordx4 v[48:51], v132, s[28:31], 0 offen {lst}")
    A("s_mov_b32 exec_hi, -1")
    stamp(4)
    A("s_and_b32 s60, s3, 5"); A("s_cbranch_scc1 L_G")
    A("v_lshlrev_b32 v4, 2, v9")
    local_poll(["buffer_load_dwordx4 v[64:67], v135, s[28:31], s57 offen sc1",
                "buffer_load_dwordx4 v[16:19], v134, s[28:31], s56 offen sc1",
                "buffer_load_dwordx4 v[20:23], v134, s[28:31], s56 offen offset:1024 sc1"], [64, 16, 20], ["s56", "s57"])
    stamp(5)
    A("v_and_b32 v64, 0xffffff00, v64")
    dpp("v_max_f32", "v66", "v64", "v64", 4)
    for k in (2, 1): dpp("v_max_f32", "v66", "v66", "v66", k)
    A("v_sub_f32 v64, v64, v66"); A("v_mul_f32 v64, 0x3fb8aa3b, v64"); A("v_exp_f32 v64, v64")
    A("ds_bpermute_b32 v68, v4, v64"); A("ds_bpermute_b32 v70, v4, v64 offset:16")
    A("v_xor_b32 v65, s33, v65"); untag([16, 20])
    A("v_mul_f32 v67, v65, v64")
    for k in (4, 2, 1): dpp("v_add_f32", "v67", "v67", "v67", k)
    A("s_waitcnt lgkmcnt(0)")
    for j in (0, 2): A(f"v_pk_mul_f32 v[{16+j}:{17+j}], v[{16+j}:{17+j}], v[68:69] op_sel_hi:[1,0]")
    for j in (0, 2): A(f"v_pk_fma_f32 v[{16+j}:{17+j}], v[{20+j}:{21+j}], v[70:71], v[{16+j}:{17+j}] op_sel_hi:[1,0,1]")
    red4rows(16)
    A("v_mov_b32 v17, v16"); A("v_permlane16_swap_b32 v16, v17")
    A("v_mov_b32 v18, v16"); A("v_mov_b32 v19, v17"); A("v_permlane32_swap_b32 v16, v18"); A("v_permlane32_swap_b32 v17, v19")
    A("s_mov_b64 exec, 0xff0000")
    A("v_mov_b64 v[16:17], v[66:67]")
    A("s_mov_b64 exec, 0xffffff")
    tagput(16)
    A("buffer_store_dwordx4 v[16:19], v136, s[28:31], s58 offen sc1")
    A("s_mov_b64 exec, -1")
    stamp(6)
    A("s_cmp_lt_i32 s69, 0"); A("s_cbranch_scc1 L_G2")
    A("L_G:")
    A("s_barrier")
    gstore()
    A("L_G2:")
    if f4:
        if na: A("s_cmp_lg_u32 s96, 0"); A("s_cbranch_scc1 L_AC")
        A("s_cmp_ge_u32 s3, 4"); A("s_cbranch_scc1 L_DP" if dp2 else "s_cbranch_scc1 L_fin")
        A("s_lshl_b32 s56, s41, 2"); A("s_add_u32 s56, s56, s3")
        A("s_lshl_b32 s57, s42, 7"); A("s_and_b32 s58, s56, 16"); A("s_lshl_b32 s58, s58, 2"); A("s_add_u32 s57, s57, s58")
        A("s_and_b32 s58, s56, 7"); A("s_lshl_b32 s60, s58, 3"); A("s_add_u32 s57, s57, s60"); A("s_bfe_u32 s60, s56, 0x10003"); A("s_lshl_b32 s60, s60, 2"); A("s_add_u32 s57, s57, s60")
        A("v_add_lshl_u32 v3, v9, s57, 1")
        A("global_load_ushort v40, v3, s[4:5]")
        srd(52, 22, 2048)
        A("buffer_load_ushort v41, v3, s[52:55], 0 offen")
        A("s_lshl_b32 s60, s56, 11"); A("s_add_u32 s60, s60, s101"); A("s_add_u32 s61, s60, 1024")
        A("s_lshr_b32 s62, s56, 3"); A("s_lshl_b32 s62, s62, 14"); A("s_lshl_b32 s58, s58, 4"); A("s_add_u32 s62, s62, s58"); A("s_add_u32 s62, s62, s101"); A(f"s_add_u32 s62, s62, {GOFF}")
        for j in range(4): A(f"v_mov_b32 v{24+j}, 0")
        A("s_lshl_b32 s58, s42, 5"); A("s_add_u32 s56, s56, s58"); A("s_lshr_b32 s56, s56, 1"); A("s_and_b32 s58, s3, 1"); A("s_cselect_b32 s56, s56, 0")
        if f2:
            for j in range(4): A(f"v_mov_b32 v{28+j}, 0")
            def fl(o):
                A(f"buffer_load_dwordx4 v[{16+o}:{19+o}], v134, s[28:31], s60 offen sc1")
                A("s_mov_b32 exec_hi, 0xffffff")
                A(f"buffer_load_dwordx4 v[{24+o}:{27+o}], v134, s[28:31], s61 offen sc1")
            def fc(o):
                A("s_waitcnt vmcnt(2)")
                for j in range(4): A(f"v_xor_b32 v{24+o+j}, s{32+j}, v{24+o+j}")
                A("s_mov_b32 exec_hi, -1")
                for j in range(4): A(f"v_xor_b32 v{16+o+j}, s{32+j}, v{16+o+j}")
                A(f"v_or3_b32 v5, v{24+o}, v{25+o}, v{26+o}"); A(f"v_or3_b32 v4, v{27+o}, v{16+o}, v{17+o}"); A(f"v_or3_b32 v5, v5, v{18+o}, v{19+o}")
                A("v_bitop3_b32 v5, v5, v4, v6 bitop3:0xa8"); A("v_cmp_ne_u32 vcc, 0, v5")
            A(f"s_mov_b32 s69, {3 * locn}")
            fl(0); A("s_mov_b32 exec_hi, -1"); A("s_sleep 2")
            A("L_F1:")
            fl(4)
            fc(0)
            A("s_cbranch_vccz L_F3")
            budget()
            A("s_sub_u32 s69, s69, 1"); A("s_cbranch_scc0 L_F2")
            A("v_lshlrev_b32 v134, 7, v0"); A("s_mov_b32 s60, s62"); A("s_add_u32 s61, s62, 8192")
            A("L_F2:")
            fl(0)
            fc(4)
            A("s_cbranch_vccnz L_F1")
            for j in range(4): A(f"v_permlane32_swap_b32 v{20+j}, v{28+j}")
            for j in (0, 2): A(f"v_pk_add_f32 v[{32+j}:{33+j}], v[{20+j}:{21+j}], v[{28+j}:{29+j}]")
            A("s_branch L_F4")
            A("L_F3:")
            for j in range(4): A(f"v_permlane32_swap_b32 v{16+j}, v{24+j}")
            for j in (0, 2): A(f"v_pk_add_f32 v[{32+j}:{33+j}], v[{16+j}:{17+j}], v[{24+j}:{25+j}]")
            A("L_F4:")
        else:
            l = lab("G"); l2 = lab("G")
            A(f"s_mov_b32 s69, {3 * locn}")
            A(f"{l}:")
            A("buffer_load_dwordx4 v[16:19], v134, s[28:31], s60 offen sc1")
            A("s_mov_b32 exec_hi, 0xffffff")
            A("buffer_load_dwordx4 v[24:27], v134, s[28:31], s61 offen sc1")
            budget()
            A("s_sub_u32 s69, s69, 1"); A(f"s_cbranch_scc0 {l2}")
            A("s_mov_b32 exec_hi, -1"); A("v_lshlrev_b32 v134, 7, v0"); A("s_mov_b32 exec_hi, 0xffffff"); A("s_mov_b32 s60, s62"); A("s_add_u32 s61, s62, 8192")
            A(f"{l2}:")
            A("s_waitcnt vmcnt(0)")
            for j in range(4): A(f"v_xor_b32 v{24+j}, s{32+j}, v{24+j}")
            A("s_mov_b32 exec_hi, -1")
            for j in range(4): A(f"v_xor_b32 v{16+j}, s{32+j}, v{16+j}")
            A("v_or3_b32 v5, v24, v25, v26"); A("v_or3_b32 v4, v27, v16, v17"); A("v_or3_b32 v5, v5, v18, v19")
            A("v_bitop3_b32 v5, v5, v4, v6 bitop3:0xa8"); A("v_cmp_ne_u32 vcc, 0, v5")
            A(f"s_cbranch_vccnz {l}")
        stamp(8)
        fr0 = len(L)
        if not f2:
            for j in range(4): A(f"v_permlane32_swap_b32 v{16+j}, v{24+j}")
            for j in (0, 2): A(f"v_pk_add_f32 v[{16+j}:{17+j}], v[{16+j}:{17+j}], v[{24+j}:{25+j}]")
        A("v_lshlrev_b32 v40, 16, v40")
        A("v_permlane16_swap_b32 v16, v17"); A("v_permlane16_swap_b32 v18, v19")
        A("v_add_f32 v16, v16, v17"); A("v_add_f32 v18, v18, v19")
        for k in (8, 4, 2, 1):
            dpp("v_add_f32", "v16", "v16", "v16", k); dpp("v_add_f32", "v18", "v18", "v18", k)
        A("v_permlane32_swap_b32 v16, v18")
    else:
        A("s_and_b32 s57, s3, 5"); A("s_cbranch_scc1 L_fin")
        A("s_lshl_b32 s56, s38, 1"); A("s_lshr_b32 s57, s3, 1"); A("s_add_u32 s56, s56, s57")
        A("s_lshr_b32 s57, s56, 3"); A("s_lshl_b32 s57, s57, 6"); A("s_and_b32 s58, s56, 3"); A("s_lshl_b32 s58, s58, 4"); A("s_add_u32 s57, s57, s58")
        A("s_and_b32 s58, s56, 4"); A("s_add_u32 s57, s57, s58")
        A("v_and_b32 v5, 1, v0"); A("v_lshl_add_u32 v3, v5, 3, v9"); A("v_add_lshl_u32 v3, v3, s57, 1")
        A("global_load_ushort v40, v3, s[4:5]")
        srd(52, 22, 2048)
        A("buffer_load_ushort v41, v3, s[52:55], 0 offen")
        A("v_lshrrev_b32 v4, 1, v0"); A("v_lshlrev_b32 v4, 7, v4"); A("v_lshl_add_u32 v4, v5, 4, v4")
        A("s_lshr_b32 s60, s41, 1"); A("s_lshl_b32 s60, s60, 14"); A("s_and_b32 s61, s56, 3"); A("s_lshl_b32 s61, s61, 5"); A("s_add_u32 s60, s60, s61"); A("s_add_u32 s60, s60, s101")
        A("s_add_u32 s61, s60, 4096"); A("s_add_u32 s62, s60, 8192"); A("s_add_u32 s63, s60, 12288")
        tagonly(28)
        if fsleep:
            l = lab("H")
            A("s_and_b32 s59, s56, 63"); A("s_lshl_b32 s59, s59, 7"); A("s_add_u32 s59, s59, s60")
            A(f"{l}:")
            A(f"s_sleep {fsleep}")
            A("s_load_dword s72, s[26:27], s59 glc")
            budget()
            A("s_waitcnt lgkmcnt(0)")
            A("s_xor_b32 s72, s72, s32"); A("s_and_b32 s72, s72, 0xff")
            A(f"s_cbranch_scc1 {l}")
            stamp(13)
        l = lab("G")
        A(f"s_mov_b32 s69, {2 * locn}")
        A(f"{l}:")
        for k in range(3): A(f"buffer_load_dwordx4 v[{16+4*k}:{19+4*k}], v4, s[28:31], s{60+k} offen sc1")
        A("s_mov_b32 exec_hi, 0xffff")
        A("buffer_load_dwordx4 v[28:31], v4, s[28:31], s63 offen sc1")
        A("s_mov_b32 exec_hi, -1")
        budget()
        A("s_sub_u32 s69, s69, 1"); A(f"s_cselect_b32 s59, {GOFF}, 0"); A("v_add_u32 v4, s59, v4")
        A("s_waitcnt vmcnt(0)")
        tagcheck([16, 20, 24, 28], "v5")
        A(f"s_cbranch_vccnz {l}")
        stamp(8)
        untag([16, 20, 24, 28])
        A("v_pk_add_f32 v[16:17], v[16:17], v[20:21]"); A("v_pk_add_f32 v[18:19], v[18:19], v[22:23]")
        A("v_pk_add_f32 v[24:25], v[24:25], v[28:29]"); A("v_pk_add_f32 v[26:27], v[26:27], v[30:31]")
        for j in range(4): A(f"v_permlane32_swap_b32 v{16+j}, v{24+j}")
        for j in (0, 2): A(f"v_pk_add_f32 v[{16+j}:{17+j}], v[{16+j}:{17+j}], v[{24+j}:{25+j}]")
        A("v_permlane16_swap_b32 v16, v17"); A("v_permlane16_swap_b32 v18, v19")
        A("v_add_f32 v16, v16, v17"); A("v_add_f32 v18, v18, v19")
        for k in (8, 4, 2):
            dpp("v_add_f32", "v16", "v16", "v16", k); dpp("v_add_f32", "v18", "v18", "v18", k)
        A("v_lshlrev_b32 v40, 16, v40")
        A("v_permlane32_swap_b32 v16, v18")
    A("v_cvt_pk_bf16_f32 v16, v18, v16"); A("v_lshlrev_b32 v18, 16, v16"); A("v_and_b32 v16, 0xffff0000, v16")
    A("v_mul_f32 v17, 0xbfb8aa3b, v18"); A("v_exp_f32 v17, v17"); A("v_add_f32 v17, 1.0, v17"); A("v_rcp_f32 v17, v17")
    A("v_mul_f32 v17, v17, v18"); bf16r("v17")
    A("v_mul_f32 v16, v16, v17"); bf16r("v16")
    A("v_add_f32 v16, v16, v40")
    A("v_cvt_pk_bf16_f32 v16, v16, v16")
    m = "0x00010001" if f4 else "0x00030003"
    A(f"s_mov_b32 exec_lo, {m}"); A(f"s_mov_b32 exec_hi, {m}")
    A(f"buffer_store_short v16, v3, s[52:55], 0 offen {outsc}")
    if f2:
        import re as _re
        L[fr0:] = [_re.sub(r"\bv(16|17|18|19)\b", lambda m: f"v{int(m.group(1)) + 16}", x) for x in L[fr0:]]
    A("s_cmp_lg_u32 s56, 127"); A("s_cbranch_scc1 L_fin0")
    A("s_add_u32 s36, s36, 1"); A("v_mov_b32 v5, s36")
    A("s_mov_b64 exec, 1")
    A(f"buffer_store_dword v5, v7, s[28:31], 0 offen {outsc}")
    A("L_fin0:")
    stamp(9)
    if dp2:
        A("s_branch L_fin")
        A("L_DP:")
        for k in range(dp2):
            if k >= dpw: A(f"s_waitcnt vmcnt({dpw-1})")
            A("buffer_load_dwordx4 v[124:127], v138, s[12:15], s96 offen")
            if k < dp2 - 1: A(f"s_add_u32 s96, s96, {RW*128*2048}")
    A("L_fin:")
    if probe is not None:
        A(f"v_readfirstlane_b32 s3, v{VST+2}"); A(f"v_readfirstlane_b32 s4, v{VST}"); A(f"v_readfirstlane_b32 s5, v{VST+1}")
        A(f"s_cmp_lg_u32 s3, {probe[1]}"); A("s_cbranch_scc1 L_end")
        if agg is not None:
            A("s_mov_b64 exec, 1"); A("s_lshl_b32 s6, s2, 7"); A("s_add_u32 s6, s6, 0x8000000"); A("v_mov_b32 v2, s6")
            A(f"global_store_dword v2, v{VST}, s[26:27] sc1"); A("s_waitcnt vmcnt(0)")
        A(f"s_cmp_lg_u32 s2, {probe[0]}"); A("s_cbranch_scc1 L_end")
        if agg is not None:
            A("L_spin0:")
            A("s_memrealtime s[0:1]"); A("s_waitcnt lgkmcnt(0)"); A("s_sub_u32 s6, s0, s5"); A("s_cmp_lt_u32 s6, 2000"); A("s_cbranch_scc1 L_spin0")
            A("s_add_u32 s26, s26, 0x8000000"); A("s_addc_u32 s27, s27, 0")
            lo, n, op = agg
            A(f"s_mov_b32 s7, {lo*128}"); A(f"s_load_dword s4, s[26:27], s7 glc"); A("s_waitcnt lgkmcnt(0)")
            A("L_mm:")
            A("s_load_dword s8, s[26:27], s7 glc"); A("s_waitcnt lgkmcnt(0)"); A(f"s_{op}_u32 s4, s4, s8")
            A("s_add_u32 s7, s7, 128"); A(f"s_cmp_lt_u32 s7, {(lo+n)*128}"); A("s_cbranch_scc1 L_mm")
        A("s_sub_u32 s4, s4, s5"); A("s_min_u32 s4, s4, 3000"); A("s_lshl_b32 s4, s4, 4"); A("s_add_u32 s4, s4, 3000")
        A("L_spin:")
        A("s_memrealtime s[0:1]"); A("s_waitcnt lgkmcnt(0)"); A("s_sub_u32 s6, s0, s5"); A("s_cmp_lt_u32 s6, s4"); A("s_cbranch_scc1 L_spin")
    if stamps:
        A("s_waitcnt vmcnt(0)")
        stamp(7)
        A("s_getreg_b32 s0, hwreg(HW_REG_HW_ID)"); A(f"v_writelane_b32 v{VST}, s0, 15")
        A("s_mov_b64 exec, -1")
        A(f"v_readfirstlane_b32 s3, v{VST+2}")
        A("s_lshl_b32 s4, s2, 3"); A("s_add_u32 s4, s4, s3"); A("s_lshl_b32 s4, s4, 7")
        A("s_add_u32 s26, s26, s4"); A("s_addc_u32 s27, s27, 0"); A(f"s_add_u32 s26, s26, {STAMP_OFF}"); A("s_addc_u32 s27, s27, 0")
        A("v_lshlrev_b32 v2, 3, v0")
        A("s_mov_b64 exec, 0xffff")
        A(f"global_store_dwordx2 v2, v[{VST}:{VST+1}], s[26:27]")
    A("L_end:")
    A("s_endpgm")
    A(".p2align 6")
    A(".fill 256, 4, 0xbf810000")
    A("L_codeend:")
    nv = 256 if diag else max(RING + 4 * NR, 204 if na else 148)
    A('.section .rodata,"a"'); A(".p2align 6"); A(f".amdhsa_kernel {NAME}_kernel")
    A(f"  .amdhsa_next_free_vgpr {nv}"); A("  .amdhsa_next_free_sgpr 102"); A(f"  .amdhsa_accum_offset {(nv+3)//4*4}")
    A("  .amdhsa_group_segment_fixed_size 0"); A("  .amdhsa_kernarg_size 96"); A("  .amdhsa_user_sgpr_count 2")
    A("  .amdhsa_user_sgpr_kernarg_segment_ptr 1"); A("  .amdhsa_system_sgpr_workgroup_id_x 1"); A(".end_amdhsa_kernel")
    if strip:
        i0 = L.index("L_S:"); i1 = L.index("L_C:")
        body = L[i0:i1]
        if "l" in strip:
            a = next(k for k, x in enumerate(body) if x.startswith("v_dot2")); b = next(k for k, x in enumerate(body) if x.startswith("s_load_dword s36"))
            body = body[:a] + [x for x in body[a:b] if x.endswith(":") or x.startswith(("buffer_", "s_add_u32 s64", "s_memreal", "s_waitcnt lgkm", "v_writelane", "s_barrier"))] + body[b:]
        if "p" in strip: body = [x for x in body if not x.startswith(("v_perm_b32", "v_mfma"))]
        L = L[:i0] + body + L[i1:]
    L = fix(L)
    def isz(x):
        x = x.split(";")[0].strip()
        if not x or x.endswith(":") or x.startswith("."): return 0
        op = x.split()[0]
        if op.startswith(("buffer_", "global_", "ds_", "s_load", "v_mfma", "v_perm_", "v_pk_", "v_bitop", "v_bfi", "v_cvt_pk", "v_lshl_add", "v_max3", "v_dot2", "v_bfe", "v_add_lshl", "s_memreal", "v_writelane")) or "_dpp" in op or "0x" in x: return 8
        return 4
    def chain(L, name, l0, l1, step, nw, ret):
        i0 = L.index(l0); i1 = L.index(l1)
        out = L[:i0 + 1]; acc = step; k = 0
        body = []
        for x in L[i0 + 1:i1]:
            if acc >= step and isz(x):
                body.append(("pad", k)); k += 1; acc = 4
            body.append(x); acc += isz(x)
        for x in body:
            if isinstance(x, tuple):
                j = x[1]
                out.append(f"{name}{j}:"); out.append(f"s_cbranch_execz {name + str(j + nw) if j + nw < k else ret}")
            else: out.append(x)
        return out + L[i1:]
    if touch: L = chain(L, "TS_", "L_TS0:", "L_C:", touch, 7, "L_TSret")
    if atouch: L = chain(L, "TA_", "L_TA0:", "L_fin0:", atouch, 8, "L_TAret")
    if ctouch: L = chain(L, "TC_", "L_TC0:", "L_Cend:", ctouch, 1, "L_TCret")
    if ep:
        from align8 import sizes, is_ins
        for k in range(ep):
            T_ = [x for x in L if not (x.startswith("s_cbranch_scc1 L_ep") and int(x[-1]) >= k)]
            T_ = [("s_nop 0" if (x.startswith("s_cbranch_scc1 L_ep") and int(x[-1]) >= k) else x) for x in L]
            i0 = T_.index(NAME + "_kernel:")
            idx = [j for j in range(i0, len(T_)) if is_ins(T_[j])]
            sz = sizes(HEADER + "\n".join(T_) + "\n", NAME + "_kernel")
            a = 0
            for j, z in zip(idx, sz):
                if a >= 1152 * (k + 1): break
                a += z
            L[j:j] = [f"s_branch L_epx{k}", f"L_ep{k}:", "s_branch L_Cbar", f"L_epx{k}:"]
    if sord:
        i0 = L.index("L_S:"); i1 = L.index("L_C:"); k = i0
        while k < i1:
            if L[k] in ("s_add_u32 s64, s64, s65", "s_add_u32 s66, s66, s67"):
                j = k + 1
                while L[j].startswith("v_perm_b32"): j += 1
                if j > k + 1 and L[j].startswith("s_waitcnt vmcnt"):
                    x = L.pop(k); L.insert(j - 1, x); k = j
            k += 1
    if al8:
        from align8 import align
        L, st = align(L, HEADER, NAME + "_kernel", al8)
        print("align8", st)
    return HEADER + "\n".join(L) + "\n"

if __name__ == "__main__":
    for spec in sys.argv[1:]:
        name, _, kw = spec.partition(":")
        kw = eval("dict(" + kw + ")")
        open(name + ".s", "w").write(gen(**kw))
```
